```python
import torch

def _softmax(x, axis=-1):
    return torch.softmax(x, dim=axis)

def _gelu(x):
    return torch.nn.functional.gelu(x, approximate='tanh')

def _silu(x):
    return torch.nn.functional.silu(x)

def _sigmoid(x):
    return torch.sigmoid(x)

def _layernorm(x, axis=-1, eps=1e-05):
    m = x.mean(dim=axis, keepdim=True)
    v = x.var(dim=axis, keepdim=True, unbiased=False)
    return (x - m) / torch.sqrt(v + eps)

def _scatter_add(tgt, idx, src, axis=0):
    return tgt.clone().index_add_(axis, idx, src)

def _segment_sum(src, seg, n):
    out = torch.zeros((n,) + src.shape[1:], dtype=src.dtype)
    return out.index_add_(0, seg, src)

def _pad(x, pw):
    flat = tuple((v for pair in reversed(pw) for v in pair))
    return torch.nn.functional.pad(x, flat)
kernel_name = 'adaLN_cond__grouped_kv_mqa__glu_gated_glu__prompt'

def setup_inputs():

    _w = lambda a: (lambda t: t.to(torch.bfloat16) if t.is_floating_point() else t)(torch.as_tensor(a))

    def _A_setup():
        B, S, D, H = (1, 2048, 512, 32)
        Dh = D // H
        return {'x': _w((lambda *s: torch.randn(*s, dtype=torch.bfloat16) * 0.05)(B, S, D)), 'wq': _w((lambda *s: torch.randn(*s, dtype=torch.bfloat16) * 0.05)(D, H * Dh)), 'wk': _w((lambda *s: torch.randn(*s, dtype=torch.bfloat16) * 0.05)(D, Dh)), 'wv': _w((lambda *s: torch.randn(*s, dtype=torch.bfloat16) * 0.05)(D, Dh)), 'wo': _w((lambda *s: torch.randn(*s, dtype=torch.bfloat16) * 0.05)(H * Dh, D))}
    _A_in = _A_setup()

    def _B_setup():
        B, S, D, F = (1, 2048, 512, 1792)
        return {'x': _w((lambda *s: torch.randn(*s, dtype=torch.bfloat16) * 0.05)(B, S, D)), 'w_gate': _w((lambda *s: torch.randn(*s, dtype=torch.bfloat16) * 0.05)(D, F)), 'w_up': _w((lambda *s: torch.randn(*s, dtype=torch.bfloat16) * 0.05)(D, F)), 'w_down': _w((lambda *s: torch.randn(*s, dtype=torch.bfloat16) * 0.05)(F, D))}
    _B_in = _B_setup()
    return {'A_x': _A_in['x'], 'A_wq': _A_in['wq'], 'A_wk': _A_in['wk'], 'A_wv': _A_in['wv'], 'A_wo': _A_in['wo'], 'B_x': _B_in['x'], 'B_w_gate': _B_in['w_gate'], 'B_w_up': _B_in['w_up'], 'B_w_down': _B_in['w_down'], 'c': _w((lambda *s: torch.randn(*s, dtype=torch.bfloat16) * 0.1)(1, 512) * 8.0), 'w_mod': _w((lambda *s: torch.randn(*s, dtype=torch.bfloat16) * 0.1)(512, 6 * 512) * 512 ** (-0.5) * 8.0)}

def reference(A_x, A_wq, A_wk, A_wv, A_wo, B_x, B_w_gate, B_w_up, B_w_down, c, w_mod):

    def _A_ref(x, wq, wk, wv, wo):
        B, S, D = x.shape
        H = 32
        Dh = D // H
        q = (lambda x, *d: x.permute(*d))((x @ wq).reshape(B, S, H, Dh), 0, 2, 1, 3)
        k = x @ wk
        v = x @ wv
        scores = torch.einsum('bhqd,bkd->bhqk', q, k) * Dh ** (-0.5)
        p = _softmax(scores, axis=-1)
        o = torch.einsum('bhqk,bkd->bhqd', p, v)
        return (lambda x, *d: x.permute(*d))(o, 0, 2, 1, 3).reshape(B, S, H * Dh) @ wo

    def _B_ref(x, w_gate, w_up, w_down):
        g = torch.einsum('bsd,df->bsf', x, w_gate)
        u = torch.einsum('bsd,df->bsf', x, w_up)
        h = _sigmoid(g) * u
        return torch.einsum('bsf,fd->bsd', h, w_down)
    x = A_x
    mod = (_silu(c) @ w_mod).reshape(c.shape[0], 6, 1, -1)
    sa, ca, ga, sb, cb, gb = (mod[:, 0].clone(), mod[:, 1].clone(), mod[:, 2].clone(), mod[:, 3].clone(), mod[:, 4].clone(), mod[:, 5].clone())
    h = _layernorm(x, axis=-1) * (1 + ca) + sa
    x = x + ga * _A_ref(h, A_wq, A_wk, A_wv, A_wo)
    h = _layernorm(x, axis=-1) * (1 + cb) + sb
    x = x + gb * _B_ref(h, B_w_gate, B_w_up, B_w_down)
    return x
```

```python
class Asm:
    def __init__(self):
        self.L = []
        self._lab = 0
    def __call__(self, s):
        for line in s.strip("\n").split("\n"):
            line = line.strip()
            if not line: continue
            if line.endswith(":") or line.startswith(".") or line.startswith(";"):
                self.L.append(line)
            else:
                self.L.append("    " + line)
    def label(self, base):
        self._lab += 1
        return f"L_{base}_{self._lab}"
    def text(self):
        return "\n".join(self.L) + "\n"

def R(p, b, n=1):
    return f"{p}{b}" if n == 1 else f"{p}[{b}:{b+n-1}]"

def U(idx, n=1):
    if idx < 256:
        assert idx + n <= 256, (idx, n)
        return R('v', idx, n)
    return R('a', idx - 256, n)

def f32bits(x):
    import struct
    return struct.unpack("<I", struct.pack("<f", x))[0]
```

```python
from gen import *

def mf32(d, a_, b, c): return f"v_mfma_f32_32x32x16_bf16 {d}, {a_}, {b}, {c}"
def mf16(d, a_, b, c): return f"v_mfma_f32_16x16x32_bf16 {d}, {a_}, {b}, {c}"
def V(b, n=1): return R('v', b, n)

K2_ONES = 131072
K2_OIMG = K2_ONES + 8192
K2_STAT = K2_OIMG + 8192
K2_LDS  = K2_STAT + 256
def k2(a):
    name = "k2_attn_kernel"
    kernel_begin(a, name, 256)
    vq = VMQ(a)
    SA, SB, OA, OB, QA, QB, KF, V1, V2 = 16, 32, 48, 64, 80, 84, 88, 92, 96
    XR = 104
    def wo_reg(i):
        return 112 + 4*i if i < 36 else 256 + 4*(i-36)
    SL, SP = 208, 232
    a(f"""
    s_load_dwordx2 s[4:5], s[0:1], {KA_X}
    s_load_dwordx2 s[8:9], s[0:1], {KA_WS}
    s_load_dwordx4 s[12:15], s[0:1], {KA_WG}
    s_load_dwordx2 s[16:17], s[0:1], {KA_WD}
    v_lshrrev_b32 v1, 6, v0
    v_and_b32 v2, 63, v0
    v_readfirstlane_b32 s3, v1
    s_and_b32 s32, s2, 7
    s_lshr_b32 s33, s2, 3
    s_lshl_b32 s32, s32, 5
    s_add_u32 s32, s32, s33
    v_lshlrev_b32 v7, 4, v2          ; lane*16
    v_bfe_u32 v3, v2, 3, 2
    v_lshrrev_b32 v1, 5, v2          ; h
    v_and_b32 v0, 7, v2              ; tok
    v_lshlrev_b32 v3, 8, v3
    v_lshl_add_u32 v3, v1, 7, v3
    v_lshl_add_u32 v3, v0, 4, v3
    v_lshlrev_b32 v4, 3, v2
    s_lshl_b32 s34, s32, 13
    s_lshl_b32 s35, s3, 11
    s_add_u32 s34, s34, s35
    s_add_u32 s34, s34, {WS_Q}
    s_mov_b32 m0, s35
    s_waitcnt lgkmcnt(0)
    """)
    srd(a, 20, 8, WS_END)
    srd(a, 24, 8, 131072, WS_KV)
    dma = lambda off, tag: vq.issue(f"buffer_load_dwordx4 v7, s[24:27], m0 offen offset:{off} lds", tag)
    dma(0, "st1"); dma(1024, "st1")
    vq.issue(f"buffer_load_dwordx4 {V(QA,4)}, v3, s[20:23], s34 offen", "q")
    vq.issue(f"buffer_load_dwordx4 {V(QB,4)}, v3, s[20:23], s34 offen offset:1024", "q")
    a(f"s_mov_b32 s33, {WS_KN}")
    vq.issue(f"buffer_load_dwordx2 v[100:101], v4, s[20:23], s33 offen", "q")
    a("s_mul_i32 s33, s3, 6144\ns_add_u32 m0, s33, 8192")
    for i in range(4): dma(1024*i, "st2")
    a("s_add_u32 m0, m0, 4096")
    for i in range(2): dma(1024*i, "st2")
    a("s_mul_i32 s33, s3, 24576\ns_add_u32 m0, s33, 32768")
    for g in range(6):
        if g: a("s_add_u32 m0, m0, 4096")
        for i in range(4): dma(1024*i, "st3")
    a(f"""
    v_mov_b32 v12, 0x3f803f80
    v_mov_b32 v13, 0x3f803f80
    v_mov_b32 v14, 0x3f803f80
    v_mov_b32 v15, 0x3f803f80
    s_add_u32 s33, s35, {K2_ONES}
    v_add_u32 v8, s33, v7
    ds_write_b128 v8, v[12:15]
    ds_write_b128 v8, v[12:15] offset:1024
    v_add_u32 v6, 0x10000, v7
    v_and_b32 v5, 15, v2             ; l%16
    v_lshlrev_b32 v9, 4, v5
    v_lshl_add_u32 v9, v1, 8, v9
    v_add_u32 v9, 1024, v9
    v_and_b32 v10, 16, v2
    v_lshl_add_u32 v9, v10, 13, v9
    v_xor_b32 v10, 16, v10
    v_lshlrev_b32 v10, 9, v10        ; bump 8192 / 0
    s_add_u32 s33, s35, {K2_OIMG}
    v_add_u32 v11, s33, v3
    """)
    srd(a, 28, 4, 2048*512*2)
    a(f"""
    s_lshl_b32 s33, s2, 2
    s_add_u32 s33, s33, s3           ; unit
    s_cmp_lt_u32 s33, 896
    s_cselect_b32 s38, {512*1792*2}, 0
    s_cselect_b32 s46, {WS_END}, 0
    s_mov_b32 s42, s38
    s_and_b32 s34, s33, 1            ; matrix
    s_cmp_eq_u32 s34, 0
    s_cselect_b32 s36, s12, s14
    s_cselect_b32 s37, s13, s15
    s_mov_b32 s39, 0x00020000
    s_mov_b32 s40, s16
    s_mov_b32 s41, s17
    s_mov_b32 s43, 0x00020000
    s_mov_b32 s44, s8
    s_mov_b32 s45, s9
    s_mov_b32 s47, 0x00020000
    s_bfe_u32 s35, s33, 0x40001
    s_lshr_b32 s60, s33, 5
    s_mul_i32 s48, s35, {32*3584}
    s_lshl_b32 s49, s60, 7
    s_add_u32 s48, s48, s49
    v_lshrrev_b32 v4, 4, v2          ; g
    v_mul_u32_u24 v8, {8*3584}, v4
    v_lshl_add_u32 v8, v5, 3, v8
    """)
    for j in range(8):
        vq.issue(f"buffer_load_dwordx2 {V(SL+2*j,2)}, v8, s[36:39], s48 offen offset:{(j%2)*3584}", "side")
        if j % 2 and j < 7: a(f"s_add_u32 s48, s48, {2*3584}")
    a(f"""
    s_and_b32 s61, s33, 7            ; nb
    s_lshr_b32 s62, s33, 3           ; G
    s_lshr_b32 s48, s62, 2
    s_lshl_b32 s48, s48, 16
    s_and_b32 s49, s62, 3
    s_lshl_b32 s49, s49, 10
    s_add_u32 s48, s48, s49
    s_lshl_b32 s49, s61, 7
    s_add_u32 s48, s48, s49
    v_and_b32 v8, 31, v2
    v_lshlrev_b32 v8, 2, v8
    v_lshl_add_u32 v8, v1, 14, v8
    """)
    for j in range(8):
        vq.issue(f"buffer_load_dword {V(SL+16+j)}, v8, s[40:43], s48 offen", "side")
        if j < 7: a(f"s_add_u32 s48, s48, {4096 if j != 3 else 32768-3*4096}")
    a(f"""
    s_mul_i32 s61, s61, 112
    s_add_u32 s62, s62, s61
    s_lshl_b32 s62, s62, 11
    s_add_u32 s62, s62, {WS_WD}
    v_and_b32 v8, 1, v4
    v_lshlrev_b32 v8, 9, v8
    v_lshl_add_u32 v8, v5, 4, v8
    s_lshl_b32 s34, s34, 8
    v_add_u32 v8, s34, v8
    """)
    for e in range(4):
        a(f"""
        s_lshl_b32 s48, s60, 2
        s_add_u32 s48, s48, {e}          ; G
        s_mul_i32 s49, s48, 147
        s_lshr_b32 s49, s49, 10          ; fb
        s_mul_i32 s50, s49, 7
        s_sub_u32 s50, s48, s50          ; t
        s_mul_i32 s49, s49, 229376
        s_lshl_b32 s51, s50, 10
        s_lshl_b32 s56, s35, 13
        s_add_u32 s51, s51, s56          ; t < 4 : t*1024 + 2sp*4096
        s_lshl_b32 s56, s50, 15
        s_lshl_b32 s57, s35, 11
        s_add_u32 s56, s56, s57          ; t >= 4: 131072 + (t-4)*32768 + 2sp*1024
        s_cmp_lt_u32 s50, 4
        s_cselect_b32 s51, s51, s56
        s_cselect_b32 s56, 12, 10
        s_add_u32 s49, s49, s51
        s_add_u32 s{52+e}, s49, {WS_WGU}
        v_lshl_add_u32 v{108+e}, v1, s56, v8
        """)
    a(f"""
    v_lshlrev_b32 v12, 7, v4
    v_lshl_add_u32 v12, v0, 4, v12
    v_add_u32 v12, {K2_OIMG}, v12
    v_bfe_u32 v8, v2, 3, 1           ; half
    v_lshlrev_b32 v13, 10, v0
    v_lshl_add_u32 v13, v8, 7, v13
    v_lshl_add_u32 v13, v4, 3, v13   ; x offset
    v_lshlrev_b32 v14, 8, v8
    v_lshl_add_u32 v14, v4, 4, v14
    v_lshlrev_b32 v15, 12, v8
    v_lshrrev_b32 v8, 1, v4
    v_lshl_add_u32 v15, v8, 9, v15
    v_lshl_add_u32 v15, v0, 4, v15
    v_and_b32 v8, 1, v4
    v_lshl_add_u32 v15, v8, 3, v15   ; H2 / X1 offset
    v_lshlrev_b32 v5, 5, v0
    v_add_u32 v5, {K2_STAT}, v5
    s_lshl_b32 s33, s3, 3
    v_add_u32 v4, s33, v5
    s_lshl_b32 s63, s3, 17
    s_add_u32 s63, s63, {WS_WO}      ; wo fragments of this wave
    s_lshl_b32 s64, s32, 13
    s_lshl_b32 s33, s3, 8
    s_add_u32 s64, s64, s33          ; x soffset
    s_lshl_b32 s65, s3, 9
    s_lshr_b32 s66, s32, 2
    s_lshl_b32 s66, s66, 15
    s_lshl_b32 s33, s3, 13
    s_add_u32 s66, s66, s33
    s_and_b32 s33, s32, 3
    s_lshl_b32 s33, s33, 7
    s_add_u32 s66, s66, s33
    s_add_u32 s67, s66, {WS_X1}
    s_add_u32 s66, s66, {WS_H2}
    s_mov_b32 s68, 0x05040100
    s_mov_b32 s69, 0x07060302
    """)
    stamp(a, 1)
    vq.wait("q", "st1", extra=" lgkmcnt(0)")
    a("s_barrier")
    stamp(a, 2)
    def rdK(t): a(f"ds_read_b128 {V(KF,4)}, v{7 if t < 32 else 6} offset:{(t%32)*2048}")
    def rdV(t, second): a(f"ds_read_b128 {V(V2 if second else V1,4)}, v9 offset:{(t%4)*2048 + 512*second}")
    rdK(0); rdV(0, 0); rdV(0, 1)
    a("v_max_f32 v100, v100, v101")
    a(f"v_dot2_f32_bf16 v102, v{QA}, v{QA}, 0\nv_dot2_f32_bf16 v103, v{QB}, v{QB}, 0")
    for sh in (1, 2, 4, 8):
        a(f"v_max_f32_dpp v100, v100, v100 row_ror:{sh} {DPPM}")
        if sh < 8:
            i = {1: 1, 2: 2, 4: 3}[sh]
            a(f"v_dot2_f32_bf16 v102, v{QA+i}, v{QA+i}, v102\nv_dot2_f32_bf16 v103, v{QB+i}, v{QB+i}, v103")
    a("s_waitcnt lgkmcnt(2)")
    a(mf32(V(SA,16), V(KF,4), V(QA,4), "0"))
    a(f"""
    v_mov_b32 v101, v100
    v_mov_b32 v8, v102
    v_mov_b32 v1, v103
    v_permlane16_swap_b32 v100, v101
    v_permlane32_swap_b32 v102, v8
    v_permlane32_swap_b32 v103, v1
    v_max_f32 v100, v100, v101
    v_add_f32 v102, v102, v8
    v_add_f32 v103, v103, v1
    v_mov_b32 v101, v100
    v_max_f32 v102, v102, v103
    v_permlane32_swap_b32 v100, v101
    v_max_f32 v100, v100, v101
    v_mul_f32 v100, v100, v102
    v_cmp_lt_f32 vcc, {f32bits(2400.0):#x}, v100
    s_cbranch_vccnz L_k2_slow
    """)
    wo_order = list(range(36, 100)) + list(range(36))
    wo_state = {"grp": None}
    def wo_load(i, dst):
        g = i // 4
        if wo_state["grp"] != g:
            a(f"s_add_u32 s70, s63, {g*4096}")
            wo_state["grp"] = g
        vq.issue(f"buffer_load_dwordx4 {U(dst,4)}, v7, s[20:23], s70 offen offset:{(i%4)*1024}", f"wo{i}")
    def side_perm(k):
        if k < 16:
            e, m = divmod(k, 4)
            a(f"v_perm_b32 v{SP+4*e+m}, v{SL+2*(2*m+1)+e//2}, v{SL+2*(2*m)+e//2}, s{68+e%2}")
        else:
            e, m = divmod(k-16, 4)
            a(f"v_perm_b32 v{SP+16+4*e+m}, v{SL+16+2*m+1}, v{SL+16+2*m}, s{68+e}")
    def side_store(k):
        if k < 4: vq.issue(f"buffer_store_dwordx4 {V(SP+4*k,4)}, v{108+k}, s[44:47], s{52+k} offen", "sst")
        else: vq.issue(f"buffer_store_dwordx4 {V(SP+16+4*(k-4),4)}, v7, s[44:47], s62 offen offset:{1024*(k-4)}", "sst")
    def x_load(nt): vq.issue(f"buffer_load_dwordx2 {V(XR+2*nt,2)}, v13, s[28:31], s64 offen offset:{32*nt}", "x")
    slots = {}
    pend = [("wo", i) for i in wo_order]
    t = 16
    sched = {}
    for t in range(16, 64):
        n = 2 if t < 48 else 3
        lst = []
        if t in (18, 19, 20): lst = [("sst", 2*(t-18)), ("sst", 2*(t-18)+1)]; n = 1
        if t in (22, 23): lst = [("x", 2*(t-22)), ("x", 2*(t-22)+1)]; n = 1
        while n and pend: lst.append(pend.pop(0)); n -= 1
        sched[t] = lst
    assert not pend, len(pend)
    def ev(item):
        k, i = item
        if k == "wo": wo_load(i, wo_reg(i))
        elif k == "sst": side_store(i)
        elif k == "x": x_load(i)
    def phase(t, isA):
        X, Y = (SA, SB) if isA else (SB, SA)
        OX, OY = (OA, OB) if isA else (OB, OA)
        QY = QB if isA else QA
        e = lambda i: a(f"v_exp_f32 v{X+i}, v{X+i}")
        def c(j, B=X):
            d = B+j if j < 4 else B+8+j-4
            a(f"v_cvt_pk_bf16_f32 v{d}, v{B+2*j}, v{B+2*j+1}")
        evs = list(sched.get(t, []))
        first = isA and t == 0
        e(0)
        if not first: c(7, Y)
        e(1); e(2)
        if not first:
            a(mf32(V(OY,16), V(V2,4), V(Y+8,4), V(OY,16)))
            if isA: rdV(t, 1)
            else:
                if t < 63: a("s_waitcnt lgkmcnt(0)")
                if len(evs) > 1: ev(evs[1])
        c(0); e(3); e(4); c(1)
        if not isA and t == 17:
            for k in range(12): side_perm(k)
        e(5)
        if isA or t < 63:
            a(mf32(V(Y,16), V(KF,4), V(QY,4), "0"))
        if isA:
            if t in (3, 15):
                vq.wait("st2" if t == 3 else "st3", extra=" lgkmcnt(1)")
                a("s_barrier")
            else:
                a(f"s_waitcnt lgkmcnt({1 if t else 0})")
            if t < 63: rdK(t+1)
        else:
            if len(evs) > 2: ev(evs[2])
        e(6); c(2); e(7); e(8); c(3)
        if not isA and t % 4 == 3 and t < 63: a("v_add_u32 v9, v10, v9")
        if not isA and t == 17:
            for k in range(12, 24): side_perm(k)
        e(9); e(10)
        a(mf32(V(OX,16), V(V1,4), V(X,4), "0" if t == 0 else V(OX,16)))
        if isA:
            if t == 17: vq.wait("side", extra=f" lgkmcnt(1)")
            else: a(f"s_waitcnt lgkmcnt({1 if t < 63 else 0})")
            if evs: ev(evs[0])
        elif t < 63: rdV(t+1, 0)
        c(4); e(11); e(12); c(5); e(13); e(14); c(6); e(15)
    for t in range(64):
        if t == 4: stamp(a, 3)
        if t == 16: stamp(a, 4)
        phase(t, True); phase(t, False)
    stamp(a, 5)
    a(f"v_rcp_f32 v101, v{OA+8}")
    a(f"v_cvt_pk_bf16_f32 v{SB+11}, v{SB+14}, v{SB+15}")
    for r in range(2): a(f"v_mul_f32 v{OA+r}, v101, v{OA+r}")
    a(mf32(V(OB,16), V(V2,4), V(SB+8,4), V(OB,16)))
    for r in range(2, 8): a(f"v_mul_f32 v{OA+r}, v101, v{OA+r}")
    a("L_k2_tail:")
    for r in range(4): a(f"v_cvt_pk_bf16_f32 v{OA+r}, v{OA+2*r}, v{OA+2*r+1}")
    a(f"ds_write_b128 v11, {V(OA,4)}")
    a(f"v_rcp_f32 v101, v{OB+8}")
    for r in range(8): a(f"v_mul_f32 v{OB+r}, v101, v{OB+r}")
    for r in range(4): a(f"v_cvt_pk_bf16_f32 v{OB+r}, v{OB+2*r}, v{OB+2*r+1}")
    a(f"ds_write_b128 v11, {V(OB,4)} offset:1024")
    a("s_waitcnt lgkmcnt(0)\ns_barrier")
    ACC, GA, CB, SBm, BR, NB = 16, 48, 224, 240, 64, 9
    def rdB(S): a(f"ds_read_b128 {V(BR+4*(S%NB),4)}, v12 offset:{512*S}")
    for S in range(NB): rdB(S)
    a(f"s_add_u32 s71, s65, {WS_MOD + 2*2048}")
    for nt in range(4):
        vq.issue(f"buffer_load_dwordx4 {V(GA+4*nt,4)}, v14, s[20:23], s71 offen offset:{64*nt}", "ga")
    a(f"s_add_u32 s72, s65, {WS_MOD + 3*2048}")
    issued = NB
    for S in range(16):
        for nt in range(8):
            i = S*8 + nt
            w = []
            if nt == 0: w.append(f"lgkmcnt({issued - S - 1})")
            if nt % 4 == 0:
                n = vq.count({f"wo{k}" for k in range(i, i+4)})
                w.append(f"vmcnt({min(n, 63)})")
            if w: a("s_waitcnt " + " ".join(w))
            src = wo_reg(i) if i < 100 else wo_reg(i-100)
            a(mf16(V(ACC+4*nt,4), U(src,4), V(BR+4*(S%NB),4), "0" if S == 0 else V(ACC+4*nt,4)))
            if i < 28: wo_load(100+i, wo_reg(i))
            if 36 <= i < 44:
                k = i - 36
                vq.issue(f"buffer_load_dwordx4 {V(SBm+4*k if k < 4 else CB+4*(k-4),4)}, v14, s[20:23], s72 offen offset:{64*(k%4) + 2048*(k//4)}", "cs")
        if issued < 16: rdB(issued); issued += 1
    stamp(a, 6)
    T = 64
    P = 80
    a("v_and_b32 v8, 8, v2\nv_cmp_ne_u32 vcc, 0, v8")
    vq.wait("x", "ga")
    for p in range(8):
        a(f"v_lshlrev_b32 v{T+2*p}, 16, v{XR+p}\nv_and_b32 v{T+2*p+1}, 0xffff0000, v{XR+p}")
    for k in range(16): a(f"v_cndmask_b32 v{ACC+k}, v{ACC+k}, v{ACC+16+k}, vcc")
    for p in range(8):
        a(f"v_pk_fma_f32 {V(T+2*p,2)}, {V(ACC+2*p,2)}, {V(GA+2*p,2)}, {V(T+2*p,2)}")
    for p in range(8): a(f"v_cvt_pk_bf16_f32 v{P+p}, v{T+2*p}, v{T+2*p+1}")
    a("s_mov_b32 s33, 0x3f803f80")
    for p in range(8):
        a(f"v_dot2_f32_bf16 v100, v{P+p}, s33, {'0' if p == 0 else 'v100'}")
        a(f"v_dot2_f32_bf16 v101, v{P+p}, v{P+p}, {'0' if p == 0 else 'v101'}")
    for nt in range(4):
        vq.issue(f"buffer_store_dwordx2 {V(P+2*nt,2)}, v15, s[20:23], s67 offen offset:{1024*nt}", "x1")
    a(f"""
    v_add_f32_dpp v100, v100, v100 row_ror:8 {DPPM}
    v_add_f32_dpp v101, v101, v101 row_ror:8 {DPPM}
    v_mov_b32 v102, v100
    v_mov_b32 v103, v101
    v_permlane16_swap_b32 v100, v102
    v_permlane16_swap_b32 v101, v103
    v_add_f32 v100, v100, v102
    v_add_f32 v101, v101, v103
    v_mov_b32 v102, v100
    v_mov_b32 v103, v101
    v_permlane32_swap_b32 v100, v102
    v_permlane32_swap_b32 v101, v103
    v_add_f32 v100, v100, v102
    v_add_f32 v101, v101, v103
    ds_write_b64 v4, v[100:101]
    """)
    for p in range(8):
        a(f"v_lshlrev_b32 v{T+2*p}, 16, v{P+p}\nv_and_b32 v{T+2*p+1}, 0xffff0000, v{P+p}")
    a(f"""
    s_waitcnt lgkmcnt(0)
    s_barrier
    ds_read_b128 v[88:91], v5
    ds_read_b128 v[92:95], v5 offset:16
    s_mov_b32 s33, {f32bits(1.0/512):#x}
    s_mov_b32 s34, {f32bits(1e-5):#x}
    s_waitcnt lgkmcnt(0)
    v_pk_add_f32 v[88:89], v[88:89], v[90:91]
    v_pk_add_f32 v[92:93], v[92:93], v[94:95]
    v_pk_add_f32 v[88:89], v[88:89], v[92:93]
    v_mul_f32 v88, s33, v88
    v_mul_f32 v89, s33, v89
    v_fma_f32 v89, -v88, v88, v89
    v_max_f32 v89, 0, v89
    v_add_f32 v89, s34, v89
    v_rsq_f32 v90, v89
    v_mul_f32 v92, -v88, v90
    """)
    vq.wait("cs")
    for p in range(8):
        a(f"v_pk_fma_f32 {V(T+2*p,2)}, {V(T+2*p,2)}, v[90:91], v[92:93] op_sel_hi:[1,0,0]")
    for p in range(8):
        a(f"v_pk_fma_f32 {V(T+2*p,2)}, {V(T+2*p,2)}, {V(CB+2*p,2)}, {V(SBm+2*p,2)}")
    for p in range(8): a(f"v_cvt_pk_bf16_f32 v{ACC+p}, v{T+2*p}, v{T+2*p+1}")
    for nt in range(4):
        a(f"buffer_store_dwordx2 {V(ACC+2*nt,2)}, v15, s[20:23], s66 offen offset:{1024*nt}")
    fin(a)
    CA_, CB_ = 112, 128
    a("L_k2_slow:\ns_waitcnt vmcnt(0) lgkmcnt(0)")
    a("v_mov_b32 v100, 0xff800000\nv_mov_b32 v101, 0xff800000\ns_mov_b32 s33, 0")
    a("L_k2_slow1:")
    a(f"buffer_load_dwordx4 {V(KF,4)}, v7, s[24:27], s33 offen\ns_waitcnt vmcnt(0)")
    a(mf32(V(SA,16), V(KF,4), V(QA,4), "0")); a(mf32(V(SB,16), V(KF,4), V(QB,4), "0"))
    for r in range(8): a(f"v_max3_f32 v100, v{SA+2*r}, v{SA+2*r+1}, v100")
    for r in range(8): a(f"v_max3_f32 v101, v{SB+2*r}, v{SB+2*r+1}, v101")
    a("""
    s_add_u32 s33, s33, 2048
    s_cmp_lt_u32 s33, 131072
    s_cbranch_scc1 L_k2_slow1
    v_mov_b32 v102, v100
    v_mov_b32 v103, v101
    v_permlane32_swap_b32 v100, v102
    v_permlane32_swap_b32 v101, v103
    v_max_f32 v100, v100, v102
    v_max_f32 v101, v101, v103
    """)
    for r in range(16):
        a(f"v_sub_f32 v{CA_+r}, 0, v100\nv_sub_f32 v{CB_+r}, 0, v101\nv_mov_b32 v{OA+r}, 0\nv_mov_b32 v{OB+r}, 0")
    for r in range(8): a(f"v_mov_b32 v{V1+r}, 0x3f803f80")
    a("""
    s_mov_b32 s33, 0
    s_mov_b32 s34, 0x0000ffff
    s_mov_b32 s35, 0x0000ffff
    L_k2_slow2:
    """)
    a(f"""
    buffer_load_dwordx4 {V(KF,4)}, v7, s[24:27], s33 offen
    s_mov_b64 exec, s[34:35]
    buffer_load_dwordx4 {V(V1,4)}, v9, s[24:27], s33 offen
    buffer_load_dwordx4 {V(V2,4)}, v9, s[24:27], s33 offen offset:512
    s_mov_b64 exec, -1
    s_waitcnt vmcnt(0)
    """)
    a(mf32(V(SA,16), V(KF,4), V(QA,4), V(CA_,16))); a(mf32(V(SB,16), V(KF,4), V(QB,4), V(CB_,16)))
    for X, O in ((SA, OA), (SB, OB)):
        for r in range(16): a(f"v_exp_f32 v{X+r}, v{X+r}")
        for j in range(8):
            d = X+j if j < 4 else X+8+j-4
            a(f"v_cvt_pk_bf16_f32 v{d}, v{X+2*j}, v{X+2*j+1}")
        a(mf32(V(O,16), V(V1,4), V(X,4), V(O,16))); a(mf32(V(O,16), V(V2,4), V(X+8,4), V(O,16)))
    a("""
    s_nop 7
    s_nop 7
    s_add_u32 s33, s33, 2048
    s_cmp_lt_u32 s33, 131072
    s_cbranch_scc1 L_k2_slow2
    s_barrier
    s_barrier
    """)
    vq2 = VMQ(a); vq_save = vq.q; vq.q = []
    for k in range(24): side_perm(k)
    for k in range(6): side_store(k)
    a("s_waitcnt vmcnt(0)")
    for nt in range(4): x_load(nt)
    wo_state["grp"] = None
    for i in range(100):
        wo_load(i, wo_reg(i))
        if i % 32 == 31: a("s_waitcnt vmcnt(0)")
    a("s_waitcnt vmcnt(0)")
    vq.q = vq_save
    a(f"v_rcp_f32 v101, v{OA+8}")
    for r in range(8): a(f"v_mul_f32 v{OA+r}, v101, v{OA+r}")
    a("s_branch L_k2_tail")
    kernel_end(a, name, fall=False)
    return name, 256, 256, K2_LDS, descriptor(name, 512, 256)

def k3(a):
    name = "k3_glu_kernel"
    kernel_begin(a, name, 256)
    vq = VMQ(a)
    ACC, AR, NA, TMP = 16, 128, 8, 160
    a(f"""
    s_load_dwordx2 s[8:9], s[0:1], {KA_WS}
    v_lshrrev_b32 v1, 6, v0
    v_and_b32 v2, 63, v0
    v_readfirstlane_b32 s3, v1
    s_and_b32 s32, s2, 1
    s_lshl_b32 s32, s32, 3
    s_bfe_u32 s33, s2, 0x30003
    s_add_u32 s32, s32, s33          ; rb
    s_bfe_u32 s33, s2, 0x20001
    s_lshl_b32 s33, s33, 2
    s_lshr_b32 s34, s2, 6
    s_add_u32 s33, s33, s34          ; fb
    v_lshlrev_b32 v7, 4, v2
    v_add_u32 v6, 0x10000, v7
    v_add_u32 v5, 0x20000, v7
    s_lshl_b32 s35, s32, 2
    s_add_u32 s35, s35, s3
    s_lshl_b32 s36, s35, 15
    s_add_u32 s36, s36, {WS_H2}      ; h2 fragments
    s_mul_i32 s37, s35, 112
    s_mul_i32 s38, s33, 7
    s_add_u32 s37, s37, s38
    s_lshl_b32 s37, s37, 10
    s_add_u32 s37, s37, {WS_HH}
    s_add_u32 s38, s37, 4096
    s_mul_i32 s39, s33, 229376
    s_add_u32 s39, s39, {WS_WGU}
    s_lshl_b32 s40, s3, 12           ; w*4096
    s_lshl_b32 s41, s3, 13           ; w*8192
    s_mov_b32 s42, {f32bits(-LOG2E):#x}
    s_waitcnt lgkmcnt(0)
    """)
    srd(a, 20, 8, WS_END)
    a("s_add_u32 s24, s8, s39\ns_addc_u32 s25, s9, 0\ns_mov_b32 s26, 229376\ns_mov_b32 s27, 0x00020000")
    def slot(c):
        L = []
        if c < 8:
            L.append(lambda: a(f"s_add_u32 m0, s40, {c*16384}"))
            for i in range(4):
                L.append(lambda i=i: vq.issue(f"buffer_load_dwordx4 v7, s[24:27], m0 offen offset:{1024*i} lds", f"c{c}"))
            L.append(lambda: a(f"s_add_u32 s43, s36, {c*4096}"))
            for i in range(4):
                L.append(lambda i=i: vq.issue(f"buffer_load_dwordx4 {R('a', 16*c+4*i, 4)}, v7, s[20:23], s43 offen offset:{1024*i}", f"c{c}"))
        else:
            t = c - 8
            lds = [131072, 0, 32768][t]
            for hf in range(2):
                L.append(lambda hf=hf: a(f"s_add_u32 m0, s41, {lds + hf*4096}\ns_add_u32 s43, s41, {131072 + t*32768 + hf*4096}"))
                for i in range(4):
                    L.append(lambda i=i: vq.issue(f"buffer_load_dwordx4 v7, s[24:27], s43 offen offset:{1024*i} lds", f"c{c}"))
        return L
    for c in range(3):
        for f in slot(c): f()
    seq = [(t, s, s*4096 + t*1024) for s in range(32) for t in range(4)]
    for t in range(3):
        seq += [(4+t, s, [131072, 0, 32768][t] + s*1024) for s in range(32)]
    def rdA(n):
        ad = seq[n][2]
        a(f"ds_read_b128 {V(AR+4*(n%NA),4)}, v{7 - ad//65536} offset:{ad%65536}")
    def epi(g):
        A = ACC + 16*g
        T = TMP + 16*(g % 2)
        ops = []
        for r in range(8): ops.append((4, f"v_mul_f32 v{T+r}, s42, v{A+r}"))
        for r in range(8): ops.append((8, f"v_exp_f32 v{T+r}, v{T+r}"))
        for r in range(8): ops.append((4, f"v_add_f32 v{T+r}, 1.0, v{T+r}"))
        for r in range(8): ops.append((8, f"v_rcp_f32 v{T+r}, v{T+r}"))
        for r in range(8): ops.append((4, f"v_mul_f32 v{T+r}, v{T+r}, v{A+8+r}"))
        for r in range(4): ops.append((4, f"v_cvt_pk_bf16_f32 v{T+8+r}, v{T+2*r}, v{T+2*r+1}"))
        ops.append((4, f"buffer_store_dwordx4 {V(T+8,4)}, v7, s[20:23], s{37 + g//4} offen offset:{1024*(g%4)}"))
        return ops
    stamp(a, 1)
    vq.wait("c0"); a("s_barrier")
    stamp(a, 2)
    LA = 6
    for n in range(LA): rdA(n)
    pend = []
    eq = []
    N = len(seq)
    for n in range(N):
        t, s, _ = seq[n]
        if n == 128: stamp(a, 3)
        if n < 128 and n % 16 == 0: pend = slot(n//16 + 3)
        if n == 128 + 3:
            for g in range(4): eq += epi(g)
        if n == 160 + 3: eq += epi(4)
        if n == 192 + 3: eq += epi(5)
        a(f"s_waitcnt lgkmcnt({min(LA-1, N-1-n)})")
        a(mf32(V(ACC+16*t,16), V(AR+4*(n%NA),4), R('a', 4*s, 4), "0" if s == 0 else V(ACC+16*t,16)))
        nx = n + LA
        if nx < N and ((nx < 128 and nx % 16 == 0) or (nx >= 128 and nx % 32 == 0)):
            c = nx//16 if nx < 128 else 8 + (nx-128)//32
            vq.wait(f"c{c}"); a("s_barrier")
        if nx < N: rdA(nx)
        if pend and n % 16 < 10: pend.pop(0)()
        bud = 20
        while eq and eq[0][0] <= bud:
            cst, txt = eq.pop(0); bud -= cst
            if txt.startswith("buffer"): vq.issue(txt, "st")
            else: a(txt)
    assert not pend and not eq
    stamp(a, 4)
    for cst, txt in epi(6): a(txt)
    kernel_end(a, name)
    return name, 256, 256, 163840, descriptor(name, 384, 256)

def k4(a):
    name = "k4_down_kernel"
    kernel_begin(a, name, 256)
    vq = VMQ(a)
    ACC = 16
    X1, GB = 80, 88
    DEP = 14
    a(f"""
    s_load_dwordx2 s[8:9], s[0:1], {KA_WS}
    s_load_dwordx2 s[4:5], s[0:1], {KA_OUT}
    v_lshrrev_b32 v1, 6, v0
    v_and_b32 v2, 63, v0
    v_readfirstlane_b32 s3, v1
    s_and_b32 s32, s2, 3
    s_lshl_b32 s32, s32, 3
    s_bfe_u32 s33, s2, 0x30003
    s_add_u32 s32, s32, s33          ; tb
    s_bfe_u32 s33, s2, 0x10002
    s_lshl_b32 s33, s33, 2
    s_lshr_b32 s34, s2, 6
    s_add_u32 s33, s33, s34          ; nb
    v_lshlrev_b32 v7, 4, v2
    s_mul_i32 s35, s3, 28            ; first G
    s_mul_i32 s36, s33, 112
    s_add_u32 s36, s36, s35
    s_lshl_b32 s36, s36, 11
    s_add_u32 s36, s36, {WS_WD}
    s_mul_i32 s37, s32, 224
    s_add_u32 s37, s37, s35
    s_lshl_b32 s37, s37, 10
    s_add_u32 s37, s37, {WS_HH}
    s_add_u32 s38, s37, {112*1024}
    s_waitcnt lgkmcnt(0)
    """)
    srd(a, 20, 8, WS_END)
    def F(g, k): return 256 + 16*(g % DEP) + 4*k
    def loads(g):
        L = []
        if g % 2 == 0 and g: L.append(lambda: a("s_add_u32 s36, s36, 4096"))
        for e in range(2):
            L.append(lambda e=e: vq.issue(f"buffer_load_dwordx4 {U(F(g,e),4)}, v7, s[20:23], s36 offen offset:{(g%2)*2048 + e*1024}", f"g{g}"))
        if g % 4 == 0 and g: L.append(lambda: a("s_add_u32 s37, s37, 4096\ns_add_u32 s38, s38, 4096"))
        for tk in range(2):
            L.append(lambda tk=tk: vq.issue(f"buffer_load_dwordx4 {U(F(g,2+tk),4)}, v7, s[20:23], s{37+tk} offen offset:{(g%4)*1024}", f"g{g}"))
        return L
    for g in range(DEP):
        for f in loads(g): f()
    srd(a, 24, 4, 2048*512*2)
    a(f"""
    s_lshr_b32 s40, s3, 1            ; tk
    s_and_b32 s41, s3, 1             ; rh
    s_lshl_b32 s42, s32, 1
    s_add_u32 s42, s42, s40
    s_lshl_b32 s43, s33, 2
    s_lshl_b32 s44, s41, 1
    s_add_u32 s43, s43, s44
    s_lshl_b32 s44, s42, 15
    s_lshl_b32 s45, s43, 10
    s_add_u32 s45, s45, s44
    s_add_u32 s45, s45, {WS_X1}
    s_lshl_b32 s46, s43, 6
    s_add_u32 s46, s46, {WS_MOD + 5*2048}
    s_lshl_b32 s47, s43, 5
    s_add_u32 s47, s47, s44
    v_lshrrev_b32 v1, 5, v2
    v_lshlrev_b32 v3, 5, v1
    v_and_b32 v4, 31, v2
    v_lshlrev_b32 v4, 10, v4
    v_lshl_add_u32 v4, v1, 4, v4
    s_lshl_b32 s48, s3, 12
    v_add_u32 v5, s48, v7
    s_lshl_b32 s48, s3, 14
    v_add_u32 v6, s48, v7
    """)
    stamp(a, 1)
    for g in range(28):
        vq.wait(f"g{g}")
        if g == 0: stamp(a, 2)
        pend = loads(g + DEP) if g + DEP < 28 else []
        ms = [(tk, e) for tk in range(2) for e in range(2)]
        for (tk, e) in ms:
            acc = V(ACC + 32*tk + 16*e, 16)
            a(mf32(acc, U(F(g,e),4), U(F(g,2+tk),4), "0" if g == 0 else acc))
        for f in pend: f()
        if g == 14:
            for qd in range(2):
                vq.issue(f"buffer_load_dwordx4 {V(X1+4*qd,4)}, v7, s[20:23], s45 offen offset:{1024*qd}", "e")
                for hf in range(2):
                    vq.issue(f"buffer_load_dwordx4 {V(GB+8*qd+4*hf,4)}, v3, s[20:23], s46 offen offset:{64*qd+16*hf}", "e")
    stamp(a, 3)
    for o in range(4):
        tk, rh = o >> 1, o & 1
        for e in range(2):
            for qd in range(2):
                a(f"ds_write_b128 v5, {V(ACC+32*tk+16*e+8*rh+4*qd,4)} offset:{o*16384 + (2*e+qd)*1024}")
    a("s_waitcnt lgkmcnt(0)\ns_barrier")
    RD = 112
    for src in range(4):
        for k in range(4):
            a(f"ds_read_b128 {V(RD+16*src+4*k,4)}, v6 offset:{src*4096 + k*1024}")
    T = 16
    vq.wait("e")
    for p in range(8):
        a(f"v_lshlrev_b32 v{T+2*p}, 16, v{X1+p}\nv_and_b32 v{T+2*p+1}, 0xffff0000, v{X1+p}")
    a("s_waitcnt lgkmcnt(8)")
    for k in range(8): a(f"v_pk_add_f32 {V(RD+2*k,2)}, {V(RD+2*k,2)}, {V(RD+16+2*k,2)}")
    a("s_waitcnt lgkmcnt(0)")
    for k in range(8): a(f"v_pk_add_f32 {V(RD+32+2*k,2)}, {V(RD+32+2*k,2)}, {V(RD+48+2*k,2)}")
    for k in range(8): a(f"v_pk_add_f32 {V(RD+2*k,2)}, {V(RD+2*k,2)}, {V(RD+32+2*k,2)}")
    for qd in range(2):
        for rr in range(4):
            for e in range(2):
                j = 8*qd + 2*rr + e
                a(f"v_fmac_f32 v{T+j}, v{GB+j}, v{RD+(2*e+qd)*4+rr}")
    for p in range(8): a(f"v_cvt_pk_bf16_f32 v{T+16+p}, v{T+2*p}, v{T+2*p+1}")
    for qd in range(2):
        a(f"buffer_store_dwordx4 {V(T+16+4*qd,4)}, v4, s[24:27], s47 offen offset:{32*qd}")
    kernel_end(a, name)
    return name, 256, 256, 65536, descriptor(name, 512, 256)

def main():
    log = build([k0, k1, k2, k3, k4], "dbg.s" if DBG else f"cdna_kernels/{NAME}.s")
    for l in log: print(l)
```

```python
import re
REG = re.compile(r'^(-|\|)?(?:abs\()?([vas])(?:(\d+)|\[(\d+):(\d+)\])\)?\|?$')
TRANS = ('v_exp_', 'v_log_', 'v_rcp_', 'v_rsq_', 'v_sqrt_', 'v_sin_', 'v_cos_')

def regs(op):
    op = op.strip()
    if op == 'vcc': return {('s', 106), ('s', 107)}
    if op == 'vcc_lo': return {('s', 106)}
    if op == 'vcc_hi': return {('s', 107)}
    if op == 'exec': return {('s', 126), ('s', 127)}
    if op == 'm0': return {('s', 124)}
    m = REG.match(op)
    if not m: return set()
    p = m.group(2)
    if m.group(3) is not None: lo = hi = int(m.group(3))
    else: lo, hi = int(m.group(4)), int(m.group(5))
    return {(p, i) for i in range(lo, hi + 1)}

class I:
    def __init__(self, line):
        self.line = line
        t = line.split(';')[0].strip()
        parts = t.split(None, 1)
        self.mn = parts[0]
        rest = parts[1] if len(parts) > 1 else ''
        ops, depth, cur = [], 0, ''
        for ch in rest:
            if ch == '[': depth += 1
            if ch == ']': depth -= 1
            if ch == ',' and depth == 0: ops.append(cur.strip()); cur = ''
            else: cur += ch
        if cur.strip(): ops.append(cur.strip())
        mods = ''
        if ops:
            sp = ops[-1].split(None, 1)
            ops[-1] = sp[0]
            mods = sp[1] if len(sp) > 1 else ''
        self.ops, self.mods = ops, mods
        mn = self.mn
        self.kind = 'other'
        self.w, self.r = set(), set()
        self.ws = 1
        self.mfma = None
        R = [regs(o) for o in ops]
        allr = lambda k: set().union(*R[k:]) if len(R) > k else set()
        if mn == 's_nop':
            self.ws = int(ops[0], 0) + 1
        elif mn.startswith('v_mfma'):
            self.kind = 'mfma'
            self.passes = 8 if '32x32x16' in mn else 4 if '16x16x32' in mn else None
            assert self.passes, mn
            self.D, self.A, self.B, self.C = R[0], R[1], R[2], R[3]
            self.w = self.D; self.r = self.A | self.B | self.C
        elif mn.startswith('v_'):
            self.kind = 'valu'
            self.trans = mn.startswith(TRANS)
            self.dpp = ('_dpp' in mn) or ('row_' in mods) or ('quad_perm' in mods)
            self.perml = mn.startswith('v_permlane')
            self.rdlane = mn.startswith(('v_readfirstlane', 'v_readlane'))
            self.dot = mn.startswith('v_dot')
            if self.perml:
                self.w = R[0] | R[1]; self.r = R[0] | R[1]
            elif mn.startswith(('v_add_co', 'v_sub_co', 'v_addc_co', 'v_subb_co', 'v_subrev_co')):
                self.w = R[0] | R[1]; self.r = allr(2)
            else:
                self.w = R[0]; self.r = allr(1)
                if mn.startswith(('v_fmac', 'v_dot2c', 'v_pk_fmac')) or self.dpp or 'UNUSED_PRESERVE' in mods: self.r |= R[0]
            if self.dot:
                self.dotC = R[0] if mn.startswith('v_dot2c') else R[3]
                self.dotAB = (R[1] | R[2])
        elif mn.startswith('ds_'):
            self.kind = 'ds'
            if mn.startswith(('ds_read', 'ds_bpermute', 'ds_permute', 'ds_swizzle')):
                self.w = R[0]; self.r = allr(1)
            else:
                self.r = allr(0)
        elif mn.startswith(('buffer_', 'global_')):
            self.kind = 'vmem'
            self.lds = (' lds' in ' ' + mods) or ('_lds_' in mn)
            self.store = ('store' in mn) or ('atomic' in mn)
            self.sdata = set()
            if mn in ('buffer_wbl2', 'buffer_inv'):
                pass
            elif self.lds:
                self.r = allr(0) | {('s', 124)}
            elif 'load' in mn:
                self.w = R[0]; self.r = allr(1)
            else:
                self.r = allr(0)
                d = R[0] if mn.startswith('buffer_') else R[1]
                if len(d) >= 3: self.sdata = d
                if 'atomic' in mn and 'sc0' in mods: self.w = R[0]
        elif mn.startswith('s_'):
            self.kind = 'salu'
            if mn.startswith(('s_cmp', 's_cbranch', 's_branch', 's_waitcnt', 's_barrier', 's_endpgm', 's_setprio', 's_sleep', 's_setpc', 's_bitcmp')):
                self.r = allr(0)
            else:
                self.w = R[0] if R else set(); self.r = allr(1)
                if 'saveexec' in mn: self.w = self.w | {('s', 126), ('s', 127)}

def need(p, c):
    n = 0
    vw = {x for x in p.w if x[0] != 's'}
    sw = {x for x in p.w if x[0] == 's'}
    if p.kind == 'valu':
        if c.kind == 'mfma' and vw & c.r: n = max(n, 2)
        if c.kind == 'valu':
            if p.trans and not c.trans and vw & c.r: n = max(n, 1)
            if (c.dpp or c.perml) and vw & c.r: n = max(n, 2)
            if c.rdlane and vw & c.r: n = max(n, 1)
            if sw & c.r: n = max(n, 4 if c.rdlane else 2)
            if 'sdwa' in p.mn and vw & (c.r | c.w): n = max(n, 1)
        if c.kind == 'vmem' and sw & c.r: n = max(n, 5)
        if c.kind == 'salu' and sw & c.r: n = max(n, 1)
        if p.dot:
            if c.kind == 'valu' and c.mn == p.mn:
                if vw & c.dotAB: n = max(n, 3)
            elif vw & (c.r | c.w): n = max(n, 3)
    if p.kind == 'mfma':
        big = p.passes == 8
        if c.kind == 'mfma':
            if p.D & (c.A | c.B): n = max(n, 12 if big else 8)
            if p.D & c.C and not (p.D == c.C and p.passes == c.passes): n = max(n, 10 if big else 6)
            if p.D & c.D and not (p.D == c.C and p.passes == c.passes): n = max(n, 10 if big else 6)
        elif c.kind in ('valu', 'vmem', 'ds'):
            if p.D & (c.r | c.w): n = max(n, 12 if big else 8)
            if c.kind == 'valu' and p.C & c.w: n = max(n, 7 if big else 3)
    if p.kind == 'salu' and ('s', 124) in p.w:
        if c.kind == 'vmem' and ('s', 124) in c.r: n = max(n, 1)
    if p.kind == 'vmem' and p.sdata and p.sdata & c.w:
        n = max(n, 2)
    return n

def pad(lines, log=None):
    out = []
    win = []
    pos = 0
    ins = 0
    for ln in lines:
        t = ln.strip()
        if not t or t.startswith(';') or t.startswith('.') or t.endswith(':'):
            out.append(ln); continue
        c = I(t)
        short = 0
        for p, ppos in win:
            d = pos - ppos
            n = need(p, c)
            if n > d and n - d > short:
                short = n - d; why = p.line
        if short:
            k = short
            while k > 0:
                s = min(k, 16)
                out.append(f"    s_nop {s-1}")
                k -= s
            pos += short; ins += 1
            if log is not None: log.append(f"pad {short}: [{why}] -> [{t}]")
        out.append(ln)
        pos += c.ws
        win.append((c, pos))
        while win and pos - win[0][1] > 20: win.pop(0)
        if c.mn == 's_endpgm': win = []
    return out
```

```python
import sys
from asmlib import *
import hazard

NAME = "adaLN_cond__grouped_kv_mqa__glu_gated_glu__prompt"
KA_X, KA_WQ, KA_WK, KA_WV, KA_WO, KA_BX, KA_WG, KA_WU, KA_WD, KA_C, KA_WMOD, KA_OUT, KA_DBG, KA_WS = [8*i for i in range(14)]
WS_MOD = 0x0
WS_KN  = 0x4000
WS_WQ  = 0x10000
WS_WKV = 0x90000
WS_WO  = 0xA0000
WS_KV  = 0x120000
WS_Q   = 0x200000
WS_X1  = 0x400000
WS_H2  = 0x600000
WS_WGU = 0x800000
WS_WD  = 0xC00000
WS_HH  = 0x1000000
import os
DBG = bool(os.environ.get("DBG"))
WS_TIM = 0x1800000
WS_END = 0x1900000 if DBG else 0x1800000
KIDX = {}
LOG2E = 1.4426950408889634

class VMQ:
    def __init__(self, a): self.a = a; self.q = []
    def issue(self, text, tag): self.a(text); self.q.append(tag)
    def count(self, tags):
        last = max(i for i, t in enumerate(self.q) if t in tags)
        return len(self.q) - 1 - last
    def wait(self, *tags, extra=""):
        n = self.count(tags)
        assert n <= 63, n
        self.a(f"s_waitcnt vmcnt({n}){extra}")

def srd(a, d, base, nbytes, off=0):
    if off:
        a(f"s_add_u32 s{d}, s{base}, {off}\ns_addc_u32 s{d+1}, s{base+1}, 0")
    else:
        a(f"s_mov_b32 s{d}, s{base}\ns_mov_b32 s{d+1}, s{base+1}")
    a(f"s_mov_b32 s{d+2}, {nbytes}\ns_mov_b32 s{d+3}, 0x00020000")

def kernel_begin(a, name, nwg):
    a(f".globl {name}\n.p2align 8\n.type {name},@function\n{name}:")
    a(f"s_cmp_ge_u32 s2, {nwg}\ns_cbranch_scc1 L_end_{name}")
    KIDX["cur"] = KIDX.get("cur", -1) + 1
    if DBG:
        a("s_memrealtime s[76:77]\ns_memtime s[80:81]")
        for i in range(1, 8): a(f"s_mov_b32 s{80+2*i}, 0")

def stamp(a, i):
    if DBG: a(f"s_memtime s[{80+2*i}:{81+2*i}]")

def fin(a):
    if DBG:
        k = KIDX["cur"]
        a(f"""
        s_waitcnt vmcnt(0)
        s_memtime s[94:95]
        s_memrealtime s[78:79]
        s_lshl_b32 s75, s2, 2
        s_add_u32 s75, s75, s3
        s_lshl_b32 s75, s75, 6
        s_add_u32 s75, s75, {WS_TIM + 0x10000*k}
        s_mov_b64 exec, 1
        v_mov_b32 v1, 0
        s_waitcnt lgkmcnt(0)
        """)
        for i, r in enumerate([76, 78] + [80+2*j for j in range(8)]):
            a(f"v_mov_b32 v0, s{r}\nbuffer_store_dword v0, v1, s[20:23], s75 offen offset:{4*i}")
    a("s_endpgm")

def kernel_end(a, name, fall=True):
    if fall: fin(a)
    a(f"L_end_{name}:\ns_endpgm")

def descriptor(name, vgpr, accum, sgpr=96):
    return f""".amdhsa_kernel {name}
  .amdhsa_next_free_vgpr {vgpr}
  .amdhsa_next_free_sgpr {sgpr}
  .amdhsa_accum_offset {accum}
  .amdhsa_group_segment_fixed_size 0
  .amdhsa_kernarg_size 112
  .amdhsa_user_sgpr_count 2
  .amdhsa_user_sgpr_kernarg_segment_ptr 1
  .amdhsa_system_sgpr_workgroup_id_x 1
.end_amdhsa_kernel
"""

DPPM = "row_mask:0xf bank_mask:0xf"

def k0(a):
    name = "k0_mod_kernel"
    kernel_begin(a, name, 256)
    a(f"""
    s_load_dwordx4 s[4:7], s[0:1], {KA_C}
    s_load_dwordx2 s[8:9], s[0:1], {KA_WS}
    s_load_dwordx4 s[12:15], s[0:1], {KA_WQ}
    s_load_dwordx2 s[16:17], s[0:1], {KA_WV}
    v_lshrrev_b32 v1, 6, v0
    v_and_b32 v2, 63, v0
    v_readfirstlane_b32 s3, v1
    s_waitcnt lgkmcnt(0)
    """)
    srd(a, 20, 8, WS_END)
    a("s_cmp_ge_u32 s2, 192\ns_cbranch_scc1 L_k0_shuf")
    srd(a, 24, 6, 512*3072*2)
    srd(a, 28, 4, 1024)
    a(f"""
    s_and_b32 s32, s2, 7
    s_lshr_b32 s33, s2, 3
    s_mul_i32 s32, s32, 6
    s_lshr_b32 s34, s33, 2
    s_add_u32 s32, s32, s34
    s_lshl_b32 s32, s32, 6
    s_and_b32 s33, s33, 3
    s_lshl_b32 s33, s33, 4
    s_add_u32 s32, s32, s33          ; col0
    s_lshl_b32 s36, s32, 1
    s_add_u32 s37, s36, {128*6144}
    s_add_u32 s38, s36, {256*6144}
    s_add_u32 s39, s36, {384*6144}
    v_lshrrev_b32 v3, 1, v0          ; row0
    v_and_b32 v4, 1, v0
    v_mul_u32_u24 v5, 6144, v3
    v_lshl_add_u32 v5, v4, 4, v5
    v_lshlrev_b32 v6, 1, v3
    """)
    for j in range(4):
        a(f"buffer_load_ushort v{8+j}, v6, s[28:31], 0 offen offset:{256*j}")
    for j in range(4):
        a(f"buffer_load_dwordx4 v[{16+4*j}:{19+4*j}], v5, s[24:27], s{36+j} offen")
    stamp(a, 1)
    a("s_waitcnt vmcnt(4)")
    stamp(a, 2)
    a(f"s_mov_b32 s40, {f32bits(-LOG2E):#x}")
    for j in range(4): a(f"v_lshlrev_b32 v{8+j}, 16, v{8+j}")
    for j in range(4): a(f"v_mul_f32 v{12+j}, s40, v{8+j}")
    for j in range(4): a(f"v_exp_f32 v{12+j}, v{12+j}")
    for j in range(4): a(f"v_add_f32 v{12+j}, 1.0, v{12+j}")
    for j in range(4): a(f"v_rcp_f32 v{12+j}, v{12+j}")
    for j in range(4): a(f"v_mul_f32 v{8+j}, v{8+j}, v{12+j}")
    for j in range(4): a(f"v_cvt_pk_bf16_f32 v{8+j}, v{8+j}, v{8+j}")
    for j in range(4): a(f"v_lshlrev_b32 v{8+j}, 16, v{8+j}")
    for j in range(4):
        a(f"s_waitcnt vmcnt({3-j})")
        for p in range(4):
            a(f"v_lshlrev_b32 v{40+2*p}, 16, v{16+4*j+p}")
            a(f"v_and_b32 v{41+2*p}, 0xffff0000, v{16+4*j+p}")
        for e in range(8):
            if j == 0: a(f"v_mul_f32 v{32+e}, v{8+j}, v{40+e}")
            else: a(f"v_fmac_f32 v{32+e}, v{8+j}, v{40+e}")
    stamp(a, 3)
    for sh in (2, 4, 8):
        for e in range(8):
            a(f"v_add_f32_dpp v{32+e}, v{32+e}, v{32+e} row_ror:{sh} {DPPM}")
    a(f"""
    v_lshrrev_b32 v3, 4, v0
    v_lshlrev_b32 v3, 6, v3
    v_lshl_add_u32 v3, v4, 5, v3
    v_and_b32 v7, 14, v0
    v_cmp_eq_u32 vcc, 0, v7
    s_and_saveexec_b64 s[42:43], vcc
    ds_write_b128 v3, v[32:35]
    ds_write_b128 v3, v[36:39] offset:16
    s_mov_b64 exec, s[42:43]
    s_waitcnt lgkmcnt(0)
    s_barrier
    s_cmp_lg_u32 s3, 0
    s_cbranch_scc1 L_k0_fin
    v_and_b32 v3, 15, v0
    v_lshlrev_b32 v3, 2, v3
    """)
    for r in range(8):
        a(f"ds_read2_b32 v[{16+2*r}:{17+2*r}], v3 offset0:{32*r} offset1:{32*r+16}")
    a("s_waitcnt lgkmcnt(0)")
    for r in range(8): a(f"v_add_f32 v{16+2*r}, v{16+2*r}, v{17+2*r}")
    for r in range(4): a(f"v_add_f32 v{16+4*r}, v{16+4*r}, v{18+4*r}")
    a("v_add_f32 v16, v16, v20\nv_add_f32 v24, v24, v28\nv_add_f32 v16, v16, v24")
    a(f"""
    v_cvt_pk_bf16_f32 v16, v16, v16
    v_lshlrev_b32 v16, 16, v16
    s_lshr_b32 s33, s32, 9
    s_cmp_eq_u32 s33, 1
    s_cselect_b32 s34, 1.0, 0
    s_cmp_eq_u32 s33, 4
    s_cselect_b32 s34, 1.0, s34
    v_add_f32 v16, s34, v16
    v_cvt_pk_bf16_f32 v16, v16, v16
    v_lshlrev_b32 v16, 16, v16
    s_lshl_b32 s35, s32, 2
    v_cmp_gt_u32 vcc, 16, v0
    s_and_saveexec_b64 s[42:43], vcc
    buffer_store_dword v16, v3, s[20:23], s35 offen
    L_k0_fin:
    """)
    fin(a)
    a("L_k0_shuf:")
    srd(a, 24, 12, 512*512*2)
    a(f"""
    s_sub_u32 s32, s2, 192
    s_lshl_b32 s32, s32, 2
    s_add_u32 s32, s32, s3           ; gw 0..255
    s_and_b32 s33, s32, 31           ; k-step
    s_lshr_b32 s34, s32, 5
    s_lshl_b32 s35, s33, 14
    s_lshl_b32 s36, s34, 7
    s_add_u32 s35, s35, s36
    s_add_u32 s36, s35, 4096
    v_and_b32 v3, 31, v2
    v_lshrrev_b32 v4, 5, v2
    v_lshlrev_b32 v3, 1, v3
    v_lshl_add_u32 v3, v4, 13, v3
    v_lshlrev_b32 v5, 4, v2          ; lane*16
    """)
    for e in range(2):
        for j in range(8):
            a(f"buffer_load_ushort v{16+8*e+j}, v3, s[24:27], s{35+j//4} offen offset:{(j%4)*1024+e*64}")
    a(f"""
    s_cmp_ge_u32 s32, 32
    s_cbranch_scc1 L_k0_nokv
    s_cmp_lt_u32 s32, 16
    s_cselect_b32 s28, s14, s16
    s_cselect_b32 s29, s15, s17
    s_mov_b32 s30, {512*16*2}
    s_mov_b32 s31, 0x00020000
    s_and_b32 s37, s32, 15
    s_lshl_b32 s37, s37, 10
    v_and_b32 v6, 15, v2
    v_lshrrev_b32 v7, 4, v2
    v_lshlrev_b32 v6, 1, v6
    v_lshl_add_u32 v6, v7, 8, v6
    """)
    for j in range(8):
        a(f"buffer_load_ushort v{40+j}, v6, s[28:31], s37 offen offset:{32*j}")
    a("s_waitcnt vmcnt(0)")
    for m in range(4): a(f"v_lshl_or_b32 v{48+m}, v{41+2*m}, 16, v{40+2*m}")
    a(f"""
    s_lshl_b32 s37, s32, 10
    s_add_u32 s37, s37, {WS_WKV}
    buffer_store_dwordx4 v[48:51], v5, s[20:23], s37 offen
    L_k0_nokv:
    s_waitcnt vmcnt(0)
    """)
    for m in range(8): a(f"v_lshl_or_b32 v{32+m}, v{17+2*m}, 16, v{16+2*m}")
    a(f"""
    s_lshl_b32 s35, s34, 16
    s_lshl_b32 s36, s33, 10
    s_add_u32 s35, s35, s36
    s_add_u32 s35, s35, {WS_WQ}
    s_add_u32 s36, s35, 32768
    buffer_store_dwordx4 v[32:35], v5, s[20:23], s35 offen
    buffer_store_dwordx4 v[36:39], v5, s[20:23], s36 offen
    """)
    kernel_end(a, name)
    return name, 256, 256, 1024, descriptor(name, 64, 64)

def k1(a):
    name = "k1_qkv_kernel"
    kernel_begin(a, name, 256)
    vq = VMQ(a)
    a(f"""
    s_load_dwordx2 s[4:5], s[0:1], {KA_X}
    s_load_dwordx2 s[8:9], s[0:1], {KA_WS}
    s_load_dwordx2 s[6:7], s[0:1], {KA_WO}
    v_lshrrev_b32 v1, 6, v0
    v_and_b32 v2, 63, v0
    v_readfirstlane_b32 s3, v1
    s_and_b32 s32, s2, 7
    s_lshr_b32 s33, s2, 3
    s_lshl_b32 s32, s32, 3
    s_lshr_b32 s34, s33, 2
    s_add_u32 s32, s32, s34          ; tt
    s_and_b32 s33, s33, 3            ; ng
    v_and_b32 v3, 15, v2             ; c
    v_lshrrev_b32 v4, 4, v2          ; tq
    v_lshlrev_b32 v5, 4, v3
    v_lshl_add_u32 v5, v4, 10, v5    ; x voffset
    v_lshlrev_b32 v6, 5, v3
    v_lshlrev_b32 v7, 4, v2          ; lane*16
    s_lshl_b32 s35, s32, 15
    s_lshl_b32 s36, s3, 13
    s_add_u32 s35, s35, s36
    s_add_u32 s36, s35, 4096
    s_lshl_b32 s37, s33, 2
    s_add_u32 s37, s37, s3           ; n-tile
    s_lshl_b32 s38, s37, 15
    s_add_u32 s38, s38, {WS_WQ}
    s_waitcnt lgkmcnt(0)
    """)
    srd(a, 24, 4, 2048*512*2)
    srd(a, 20, 8, WS_END)
    X = 16
    for st in range(2):
        for i in range(4):
            vq.issue(f"buffer_load_dwordx4 v[{X+16*st+4*i}:{X+16*st+4*i+3}], v5, s[24:27], s{35+st} offen offset:{256*i}", "x")
    CA, SA = 48, 80
    for i in range(4):
        for hf in range(2):
            vq.issue(f"buffer_load_dwordx4 v[{SA+8*i+4*hf}:{SA+8*i+4*hf+3}], v6, s[20:23], 0 offen offset:{WS_MOD+512*i+16*hf}", "mod")
            vq.issue(f"buffer_load_dwordx4 v[{CA+8*i+4*hf}:{CA+8*i+4*hf+3}], v6, s[20:23], 0 offen offset:{WS_MOD+2048+512*i+16*hf}", "mod")
    for s in range(32):
        if s % 4 == 0 and s: a("s_add_u32 s38, s38, 4096")
        vq.issue(f"buffer_load_dwordx4 a[{4*s}:{4*s+3}], v7, s[20:23], s38 offen offset:{(s%4)*1024}", "w")
    a("s_mov_b32 s40, 0x3f803f80")
    a("v_mov_b32 v8, 0\nv_mov_b32 v9, 0\nv_mov_b32 v10, 0\nv_mov_b32 v11, 0")
    stamp(a, 1)
    vq.wait("x")
    stamp(a, 2)
    for r in range(16):
        for st in range(2):
            a(f"v_dot2_f32_bf16 v{8+2*st}, v{X+16*st+r}, s40, v{8+2*st}")
            a(f"v_dot2_f32_bf16 v{9+2*st}, v{X+16*st+r}, v{X+16*st+r}, v{9+2*st}")
    a(f"""
    s_cmp_eq_u32 s3, 0
    s_cbranch_scc0 L_k1_nokvw
    s_lshr_b32 s41, s33, 1
    s_lshl_b32 s41, s41, 14
    s_add_u32 s41, s41, {WS_WKV}
    """)
    for S in range(16):
        if S % 4 == 0 and S: a("s_add_u32 s41, s41, 4096")
        a(f"buffer_load_dwordx4 a[{128+4*S}:{128+4*S+3}], v7, s[20:23], s41 offen offset:{(S%4)*1024}")
    a("s_branch L_k1_side_done\nL_k1_nokvw:")
    srd(a, 28, 6, 512*512*2)
    a(f"""
    s_and_b32 s42, s2, 15            ; S
    s_lshr_b32 s43, s2, 4
    s_lshl_b32 s43, s43, 1
    s_add_u32 s43, s43, s3
    s_sub_u32 s43, s43, 1
    s_min_u32 s43, s43, 31
    s_lshl_b32 s44, s42, 15
    s_lshl_b32 s45, s43, 5
    s_add_u32 s44, s44, s45
    s_add_u32 s45, s44, 8192
    v_lshrrev_b32 v12, 1, v4
    v_and_b32 v13, 1, v4
    v_lshlrev_b32 v12, 14, v12
    v_lshl_add_u32 v12, v13, 12, v12
    v_lshl_add_u32 v12, v3, 1, v12
    """)
    for j in range(8):
        a(f"buffer_load_ushort v{240+j}, v12, s[28:31], s{44+j//4} offen offset:{(j%4)*1024}")
    a("L_k1_side_done:")
    for sh in (1, 2, 4, 8):
        for e in range(4):
            a(f"v_add_f32_dpp v{8+e}, v{8+e}, v{8+e} row_ror:{sh} {DPPM}")
    a(f"s_mov_b32 s40, {f32bits(1.0/512):#x}\ns_mov_b32 s41, {f32bits(1e-5):#x}")
    for st in range(2):
        m, q = 8+2*st, 9+2*st
        a(f"""
        v_mul_f32 v{m}, s40, v{m}
        v_mul_f32 v{q}, s40, v{q}
        v_fma_f32 v{q}, -v{m}, v{m}, v{q}
        v_max_f32 v{q}, 0, v{q}
        v_add_f32 v{q}, s41, v{q}
        v_rsq_f32 v{q}, v{q}
        """)
    for st in range(2):
        m, q = 8+2*st, 9+2*st
        a(f"v_mov_b32 v{112+4*st}, v{q}\nv_mul_f32 v{114+4*st}, -v{m}, v{q}")
    a(f"""
    v_lshlrev_b32 v12, 9, v3         ; c*512 = (c/2)*1024 + (c%2)*512
    v_and_b32 v13, 7, v3
    v_xor_b32 v14, v4, v13
    v_xor_b32 v15, 4, v14
    s_lshl_b32 s40, s3, 7
    v_lshl_add_u32 v14, v14, 4, v12
    v_lshl_add_u32 v15, v15, 4, v12
    v_add_u32 v14, s40, v14
    v_add_u32 v15, s40, v15
    """)
    a(f"s_waitcnt vmcnt({32+8})")
    stamp(a, 3)
    T = 120
    for st in range(2):
        for i in range(4):
            t = T + 16*((st*4+i) % 2)
            for p in range(4):
                a(f"v_lshlrev_b32 v{t+2*p}, 16, v{X+16*st+4*i+p}")
                a(f"v_and_b32 v{t+2*p+1}, 0xffff0000, v{X+16*st+4*i+p}")
            for p in range(4):
                a(f"v_pk_fma_f32 v[{t+2*p}:{t+2*p+1}], v[{t+2*p}:{t+2*p+1}], v[{112+4*st}:{113+4*st}], v[{114+4*st}:{115+4*st}] op_sel_hi:[1,0,0]")
            for p in range(4):
                a(f"v_pk_fma_f32 v[{t+2*p}:{t+2*p+1}], v[{t+2*p}:{t+2*p+1}], v[{CA+8*i+2*p}:{CA+8*i+2*p+1}], v[{SA+8*i+2*p}:{SA+8*i+2*p+1}]")
            for p in range(4):
                a(f"v_cvt_pk_bf16_f32 v{t+8+p}, v{t+2*p}, v{t+2*p+1}")
            a(f"ds_write_b128 v{14+st}, v[{t+8}:{t+11}] offset:{8192*i}")
    a("v_and_b32 v8, 31, v2\nv_lshrrev_b32 v9, 5, v2")
    for sm in range(4):
        a(f"""
        v_add_u32 v10, {2*sm}, v9
        v_xor_b32 v11, v8, v10
        v_lshlrev_b32 v10, 9, v10
        v_lshl_add_u32 v{16+sm}, v11, 4, v10
        """)
    a("s_waitcnt lgkmcnt(0)\ns_barrier")
    B = 160
    ACC = 192
    def rd(s): a(f"ds_read_b128 v[{B+4*(s%8)}:{B+4*(s%8)+3}], v{16+s%4} offset:{(s//4)*4096}")
    for s in range(8): rd(s)
    stamp(a, 4)
    a("s_waitcnt vmcnt(8)")
    stamp(a, 5)
    for s in range(32):
        a(f"s_waitcnt lgkmcnt({min(7, 31-s)})")
        c = "0" if s == 0 else f"v[{ACC}:{ACC+15}]"
        a(f"v_mfma_f32_32x32x16_bf16 v[{ACC}:{ACC+15}], a[{4*s}:{4*s+3}], v[{B+4*(s%8)}:{B+4*(s%8)+3}], {c}")
        if s + 8 < 32: rd(s+8)
    a(f"""
    v_lshrrev_b32 v10, 3, v8
    v_and_b32 v11, 7, v8
    v_lshlrev_b32 v10, 13, v10
    v_lshl_add_u32 v10, v9, 7, v10
    v_lshl_add_u32 v10, v11, 4, v10
    s_lshl_b32 s40, s32, 15
    s_lshl_b32 s41, s37, 9
    s_add_u32 s40, s40, s41
    s_add_u32 s40, s40, {WS_Q}
    s_mov_b32 s46, {f32bits(0.25*LOG2E):#x}
    """)
    stamp(a, 6)
    for r in range(16): a(f"v_mul_f32 v{ACC+r}, s46, v{ACC+r}")
    for r in range(8): a(f"v_cvt_pk_bf16_f32 v{ACC+16+r}, v{ACC+2*r}, v{ACC+2*r+1}")
    a(f"buffer_store_dwordx4 v[{ACC+16}:{ACC+19}], v10, s[20:23], s40 offen")
    a(f"buffer_store_dwordx4 v[{ACC+20}:{ACC+23}], v10, s[20:23], s40 offen offset:256")
    a("s_cmp_eq_u32 s3, 0\ns_cbranch_scc1 L_k1_kv")
    a("s_waitcnt vmcnt(2)")
    for m in range(4): a(f"v_lshl_or_b32 v{248+m}, v{241+2*m}, 16, v{240+2*m}")
    a(f"""
    s_lshr_b32 s44, s43, 3
    s_lshl_b32 s44, s44, 4
    s_add_u32 s44, s44, s42
    s_lshl_b32 s44, s44, 3
    s_and_b32 s45, s43, 7
    s_add_u32 s44, s44, s45
    s_lshl_b32 s44, s44, 10
    s_add_u32 s44, s44, {WS_WO}
    buffer_store_dwordx4 v[248:251], v7, s[20:23], s44 offen
    """)
    fin(a)
    a("L_k1_kv:")
    a("s_and_b32 s41, s33, 1\ns_lshl_b32 s42, s41, 4\nv_add_u32 v8, s42, v3")
    for sp in range(2):
        a(f"""
        v_add_u32 v10, {4*sp}, v4
        v_xor_b32 v11, v8, v10
        v_lshlrev_b32 v10, 9, v10
        v_lshl_add_u32 v{16+sp}, v11, 4, v10
        """)
    for S in range(16):
        a(f"ds_read_b128 v[{32+4*S}:{35+4*S}], v{16+S%2} offset:{(S//2)*4096}")
        if S == 7: a("s_waitcnt lgkmcnt(0)")
    a(f"""
    v_and_b32 v12, 1, v4
    v_lshrrev_b32 v13, 1, v4
    v_lshlrev_b32 v13, 3, v13
    s_lshl_b32 s40, s32, 11
    s_add_u32 s40, s40, {WS_KV}
    s_waitcnt vmcnt(2) lgkmcnt(0)
    s_cmp_ge_u32 s33, 2
    s_cbranch_scc1 L_k1_v
    """)
    for S in range(16):
        c = "0" if S == 0 else "v[20:23]"
        a(f"v_mfma_f32_16x16x32_bf16 v[20:23], a[{128+4*S}:{131+4*S}], v[{32+4*S}:{35+4*S}], {c}")
    a(f"""
    v_lshl_add_u32 v13, v12, 9, v13
    v_lshl_add_u32 v13, v8, 4, v13
    v_cvt_pk_bf16_f32 v24, v20, v21
    v_cvt_pk_bf16_f32 v25, v22, v23
    buffer_store_dwordx2 v[24:25], v13, s[20:23], s40 offen
    v_dot2_f32_bf16 v26, v24, v24, 0
    v_dot2_f32_bf16 v26, v25, v25, v26
    v_mov_b32 v27, v26
    v_permlane16_swap_b32 v26, v27
    v_add_f32 v26, v26, v27
    v_mov_b32 v27, v26
    v_permlane32_swap_b32 v26, v27
    v_add_f32 v26, v26, v27
    """)
    for sh in (1, 2, 4, 8): a(f"v_max_f32_dpp v26, v26, v26 row_ror:{sh} {DPPM}")
    a(f"""
    s_lshl_b32 s40, s32, 1
    s_add_u32 s40, s40, s41
    s_lshl_b32 s40, s40, 2
    s_add_u32 s40, s40, {WS_KN}
    v_mov_b32 v27, 0
    s_mov_b64 exec, 1
    buffer_store_dword v26, v27, s[20:23], s40 offen
    """)
    fin(a)
    a("L_k1_v:")
    for S in range(16):
        c = "0" if S == 0 else "v[20:23]"
        a(f"v_mfma_f32_16x16x32_bf16 v[20:23], v[{32+4*S}:{35+4*S}], a[{128+4*S}:{131+4*S}], {c}")
    a(f"""
    s_lshl_b32 s41, s41, 9
    s_add_u32 s40, s40, s41
    v_lshl_add_u32 v13, v12, 8, v13
    v_lshl_add_u32 v13, v3, 4, v13
    v_cvt_pk_bf16_f32 v24, v20, v21
    v_cvt_pk_bf16_f32 v25, v22, v23
    buffer_store_dwordx2 v[24:25], v13, s[20:23], s40 offen offset:1024
    """)
    kernel_end(a, name)
    return name, 256, 256, 32768, descriptor(name, 448, 256)

HEADER = open(f"cdna_kernels/{NAME}.s.ref").read().split("; Override launch")[0]

def build(kernels, path):
    a = Asm()
    a('.amdgcn_target "amdgcn-amd-amdhsa--gfx950"\n.text')
    infos = [k(a) for k in kernels]
    log = []
    lines = hazard.pad(a.L, log)
    head = HEADER + "".join(f"; @launch kernel={n} grid=({g},1,1) block=({b},1,1) lds={l}\n" for n, g, b, l, d in infos)
    desc = '.section .rodata,"a"\n' + "".join(".p2align 6\n" + d for n, g, b, l, d in infos)
    open(path, "w").write(head + "\n".join(lines) + "\n" + desc)
    return log

if __name__ == "__main__":
    import gen2
    gen2.main()
```

```python
from gen import *

def mf32(d, a_, b, c): return f"v_mfma_f32_32x32x16_bf16 {d}, {a_}, {b}, {c}"
def mf16(d, a_, b, c): return f"v_mfma_f32_16x16x32_bf16 {d}, {a_}, {b}, {c}"
def V(b, n=1): return R('v', b, n)
HHST = os.environ.get('HHST', 'sc1')
TOUCH = int(os.environ.get('TOUCH', '0'))
K2PF = int(os.environ.get('K2PF', '0'))
K2ST = os.environ.get('K2ST', '')
ONESV = os.environ.get('ONESV', '0')

K2_ONES = 131072
K2_OIMG = K2_ONES + 8192
K2_MOD  = K2_OIMG + 8192
K2_STAT = K2_MOD + 8192
K2_LDS  = K2_STAT + 256
def k2(a):
    name = "k2_attn_kernel"
    kernel_begin(a, name, 256)
    vq = VMQ(a)
    SA, SB, OA, OB, QA, QB, KF, V1, V2 = 16, 32, 48, 64, 80, 84, 88, 92, 96
    XR = 104
    NREG = 100
    def wo_reg(i):
        return 112 + 4*i if i < 36 else 256 + 4*(i-36)
    a(f"""
    s_load_dwordx2 s[8:9], s[0:1], {KA_WS}
    s_load_dwordx2 s[4:5], s[0:1], {KA_X}
    s_load_dwordx4 s[12:15], s[0:1], {KA_WG}
    s_load_dwordx2 s[16:17], s[0:1], {KA_WD}
    v_lshrrev_b32 v1, 6, v0
    v_and_b32 v2, 63, v0
    v_readfirstlane_b32 s3, v1
    s_and_b32 s32, s2, 7
    s_lshr_b32 s33, s2, 3
    s_lshl_b32 s32, s32, 5
    s_add_u32 s32, s32, s33
    v_lshlrev_b32 v7, 4, v2          ; lane*16
    v_bfe_u32 v3, v2, 3, 2
    v_lshrrev_b32 v1, 5, v2          ; h
    v_and_b32 v0, 7, v2              ; tok
    v_lshlrev_b32 v3, 8, v3
    v_lshl_add_u32 v3, v1, 7, v3
    v_lshl_add_u32 v3, v0, 4, v3
    v_lshlrev_b32 v4, 3, v2
    s_lshl_b32 s34, s32, 13
    s_lshl_b32 s35, s3, 11
    s_add_u32 s34, s34, s35
    s_add_u32 s34, s34, {WS_Q}
    s_lshl_b32 s73, s3, 12
    s_mov_b32 m0, s73
    s_mov_b32 s33, {WS_KN}
    s_waitcnt lgkmcnt(0)
    """)
    srd(a, 24, 8, 131072, WS_KV)
    dma = lambda off, tag: vq.issue(f"buffer_load_dwordx4 v7, s[24:27], m0 offen offset:{off} lds", tag)
    for i in range(4): dma(1024*i, "R0")
    srd(a, 20, 8, WS_END)
    vq.issue(f"buffer_load_dwordx4 {V(QA,4)}, v3, s[20:23], s34 offen", "q")
    vq.issue(f"buffer_load_dwordx4 {V(QB,4)}, v3, s[20:23], s34 offen offset:1024", "q")
    vq.issue(f"buffer_load_dwordx2 v[100:101], v4, s[20:23], s33 offen", "q")
    if TOUCH:
        a(f"""
        s_lshr_b32 s33, s2, 3
        s_lshl_b32 s33, s33, 2
        s_add_u32 s33, s33, s3
        s_mul_i32 s33, s33, {40*128}
        s_add_u32 s33, s33, {WS_WO}
        v_min_u32 v8, 39, v2
        v_lshlrev_b32 v8, 7, v8
        """)
        vq.issue("buffer_load_dword v111, v8, s[20:23], s33 offen", "pf")
    a(f"""
    v_and_b32 v5, 15, v2             ; l%16
    v_and_b32 v12, 11, v2
    v_cmp_eq_u32 vcc, 0, v12
    v_mov_b32 v13, {ONESV}
    v_mov_b32 v14, 0x3f803f80
    v_cndmask_b32 v12, v13, v14, vcc
    v_mov_b32 v13, v12
    v_mov_b32 v14, v12
    v_mov_b32 v15, v12
    s_add_u32 s33, s35, {K2_ONES}
    v_add_u32 v8, s33, v7
    ds_write_b128 v8, v[12:15]
    ds_write_b128 v8, v[12:15] offset:1024
    v_add_u32 v6, 0x10000, v7
    v_lshlrev_b32 v9, 4, v5
    v_lshl_add_u32 v9, v1, 8, v9
    v_add_u32 v9, 1024, v9
    v_and_b32 v10, 16, v2
    v_lshl_add_u32 v9, v10, 13, v9
    v_xor_b32 v10, 16, v10
    v_lshlrev_b32 v10, 9, v10        ; bump 8192 / 0
    s_add_u32 s33, s35, {K2_OIMG}
    v_add_u32 v11, s33, v3
    v_lshrrev_b32 v4, 4, v2          ; g
    """)
    srd(a, 28, 4, 2048*512*2)
    a(f"""
    s_lshr_b32 s33, s2, 3
    s_lshl_b32 s33, s33, 2
    s_add_u32 s33, s33, s3
    s_and_b32 s34, s33, 1
    s_cmp_eq_u32 s34, 0
    s_cselect_b32 s36, s12, s14
    s_cselect_b32 s37, s13, s15
    s_mov_b32 s38, {512*3584}
    s_mov_b32 s39, 0x00020000
    s_lshr_b32 s34, s33, 1
    s_mul_i32 s48, s34, {8*3584}
    s_bfe_u32 s34, s2, 0x20001
    s_lshl_b32 s49, s34, 9
    s_mul_i32 s50, s34, 384
    s_add_u32 s50, s50, {2048-512}
    v_lshrrev_b32 v8, 3, v2
    v_mul_u32_u24 v8, 3584, v8
    v_and_b32 v102, 7, v2
    v_min_u32 v102, 6, v102
    v_lshl_add_u32 v8, v102, 7, v8
    v_cmp_gt_u32 vcc, 4, v102
    v_mov_b32 v102, s49
    v_mov_b32 v103, s50
    v_cndmask_b32 v102, v103, v102, vcc
    v_add_u32 v108, v102, v8
    s_mul_i32 s49, s33, {14*1024}
    s_bfe_u32 s34, s2, 0x10002
    s_lshl_b32 s34, s34, 9
    s_add_u32 s49, s49, s34
    v_lshrrev_b32 v8, 2, v2
    v_min_u32 v8, 13, v8
    v_and_b32 v102, 3, v2
    v_lshlrev_b32 v102, 7, v102
    v_lshl_add_u32 v109, v8, 10, v102
    """)
    srd(a, 40, 16, 1792*1024)
    a(f"""
    v_lshlrev_b32 v12, 7, v4
    v_lshl_add_u32 v12, v0, 4, v12
    v_add_u32 v12, {K2_OIMG}, v12
    v_bfe_u32 v8, v2, 3, 1           ; half
    v_lshlrev_b32 v13, 10, v0
    v_lshl_add_u32 v13, v8, 7, v13
    v_lshl_add_u32 v13, v4, 3, v13   ; x offset
    v_lshlrev_b32 v14, 8, v8
    v_lshl_add_u32 v14, v4, 4, v14
    s_lshl_b32 s65, s3, 9
    s_add_u32 s65, s65, {K2_MOD}
    v_add_u32 v14, s65, v14
    v_lshlrev_b32 v15, 12, v8
    v_lshrrev_b32 v8, 1, v4
    v_lshl_add_u32 v15, v8, 9, v15
    v_lshl_add_u32 v15, v0, 4, v15
    v_and_b32 v8, 1, v4
    v_lshl_add_u32 v15, v8, 3, v15   ; H2 / X1 offset
    v_lshlrev_b32 v5, 5, v0
    v_add_u32 v5, {K2_STAT}, v5
    s_lshl_b32 s33, s3, 3
    v_add_u32 v4, s33, v5
    s_lshl_b32 s63, s3, 17
    s_add_u32 s63, s63, {WS_WO}
    s_lshl_b32 s64, s32, 13
    s_lshl_b32 s33, s3, 8
    s_add_u32 s64, s64, s33          ; x soffset
    s_lshr_b32 s66, s32, 2
    s_lshl_b32 s66, s66, 15
    s_lshl_b32 s33, s3, 13
    s_add_u32 s66, s66, s33
    s_and_b32 s33, s32, 3
    s_lshl_b32 s33, s33, 7
    s_add_u32 s66, s66, s33
    s_add_u32 s67, s66, {WS_X1}
    s_add_u32 s66, s66, {WS_H2}
    s_add_u32 s68, s35, {WS_MOD + 4096}
    s_add_u32 s69, s35, {K2_MOD}
    v_add_u32 v3, s73, v7
    v_add_u32 v0, 0x10000, v3
    """)
    STP = [int(x) for x in os.environ.get("STP", "").split(",") if x]
    stamp(a, 1)
    vq.wait("q", "R0", extra=" lgkmcnt(0)")
    a("s_barrier")
    stamp(a, 2)
    def rdK(t): a(f"ds_read_b128 {V(KF,4)}, v{7 if t < 32 else 6} offset:{(t%32)*2048}")
    def rdV(t, second): a(f"ds_read_b128 {V(V2 if second else V1,4)}, v9 offset:{(t%4)*2048 + 512*second}")
    rdK(0); rdV(0, 0); rdV(0, 1)
    a("v_max_f32 v100, v100, v101")
    a(f"v_dot2_f32_bf16 v102, v{QA}, v{QA}, 0\nv_dot2_f32_bf16 v103, v{QB}, v{QB}, 0")
    for sh in (1, 2, 4, 8):
        a(f"v_max_f32_dpp v100, v100, v100 row_ror:{sh} {DPPM}")
        if sh < 8:
            i = {1: 1, 2: 2, 4: 3}[sh]
            a(f"v_dot2_f32_bf16 v102, v{QA+i}, v{QA+i}, v102\nv_dot2_f32_bf16 v103, v{QB+i}, v{QB+i}, v103")
    a("s_waitcnt lgkmcnt(2)")
    a(mf32(V(SA,16), V(KF,4), V(QA,4), "0"))
    a(f"""
    v_mov_b32 v101, v100
    v_mov_b32 v8, v102
    v_mov_b32 v1, v103
    v_permlane16_swap_b32 v100, v101
    v_permlane32_swap_b32 v102, v8
    v_permlane32_swap_b32 v103, v1
    v_max_f32 v100, v100, v101
    v_add_f32 v102, v102, v8
    v_add_f32 v103, v103, v1
    v_mov_b32 v101, v100
    v_max_f32 v102, v102, v103
    v_permlane32_swap_b32 v100, v101
    v_max_f32 v100, v100, v101
    v_mul_f32 v100, v100, v102
    v_cmp_lt_f32 vcc, {f32bits(2400.0):#x}, v100
    s_cbranch_vccnz L_k2_slow
    """)
    evs = []
    for Rn in range(1, 8):
        for i in range(4):
            evs.append((f"s_add_u32 m0, s73, {Rn*16384}" if i == 0 else None,
                        f"buffer_load_dwordx4 v7, s[24:27], m0 offen offset:{1024*i} lds", f"R{Rn}"))
    ev_kv = evs
    ev_misc = [(None, "buffer_load_dword v111, v108, s[36:39], s48 offen", "pf"),
               (None, "buffer_load_dword v111, v109, s[40:43], s49 offen", "pf"),
               ("s_mov_b32 m0, s69", "buffer_load_dwordx4 v7, s[20:23], s68 offen lds", "mod"),
               (None, "buffer_load_dwordx4 v7, s[20:23], s68 offen offset:1024 lds", "mod")]
    if not K2PF: ev_misc = ev_misc[2:]
    ev_wo = []
    for i in list(range(36, NREG)) + list(range(36)):
        ev_wo.append((f"s_add_u32 s70, s63, {(i//4)*4096}" if i % 4 == 0 else None,
                      f"buffer_load_dwordx4 {U(wo_reg(i),4)}, v7, s[20:23], s70 offen offset:{(i%4)*1024}", f"wo{i}"))
    ev_x = [(None, f"buffer_load_dwordx2 {V(XR+2*nt,2)}, v13, s[28:31], s64 offen offset:{32*nt}", "x") for nt in range(4)]
    ev_late = []
    for i in range(NREG, 128):
        j = (i - NREG)//4
        ev_late.append((f"s_add_u32 m0, s73, {j*16384}\ns_add_u32 s71, s63, {(i//4)*4096}" if i % 4 == 0 else None,
                        f"buffer_load_dwordx4 v7, s[20:23], s71 offen offset:{(i%4)*1024} lds", f"wo{i}"))
    BARS = {7: ("R1", "R2"), 23: ("R7",), 41: None, 57: None}
    sched = {t: [] for t in range(64)}
    def place(lst, t, per):
        lst = list(lst)
        while lst:
            k = per(t) if callable(per) else per
            sched[t] += lst[:k]; lst = lst[k:]; t += 1
        return t
    t = place(ev_kv, 0, 2)
    t = place(ev_misc, t, 2)
    t = place(ev_wo, t, 3)
    assert t <= 50, t
    t = place(ev_late[:20], t, 3)
    t = place(ev_x, t, 3)
    t = place(ev_late[20:], max(t, 58), 2)
    assert t <= 64, t
    def ev(e, setup=True):
        if e[0]: a(e[0])
        vq.issue(e[1], e[2])
    def phase(t, isA):
        X, Y = (SA, SB) if isA else (SB, SA)
        OX, OY = (OA, OB) if isA else (OB, OA)
        QY = QB if isA else QA
        e = lambda i: a(f"v_exp_f32 v{X+i}, v{X+i}")
        def c(j, B=X):
            d = B+j if j < 4 else B+8+j-4
            a(f"v_cvt_pk_bf16_f32 v{d}, v{B+2*j}, v{B+2*j+1}")
        E = sched[t]
        if len(E) == 2: E = [E[0], None, E[1]]
        E = E + [None]*(3-len(E))
        def setup(k):
            if E[k] and E[k][0]: a(E[k][0])
        def issue(k):
            if E[k]: vq.issue(E[k][1], E[k][2])
        first = isA and t == 0
        e(0)
        if not first: c(7, Y)
        e(1); e(2)
        if not first: a(mf32(V(OY,16), V(V2,4), V(Y+8,4), V(OY,16)))
        if isA:
            setup(0)
            if not first: rdV(t, 1)
        else:
            if t < 63: a("s_waitcnt lgkmcnt(0)")
            issue(1); setup(2)
        c(0); e(3); e(4); c(1); e(5)
        if isA or t < 63:
            a(mf32(V(Y,16), V(KF,4), V(QY,4), "0"))
        if isA:
            if t in BARS:
                if BARS[t]: vq.wait(*BARS[t], extra=" lgkmcnt(1)")
                else: a("s_waitcnt lgkmcnt(1)")
                a("s_barrier")
            else:
                a(f"s_waitcnt lgkmcnt({1 if t else 0})")
            if t < 63: rdK(t+1)
        else:
            issue(2)
        e(6); c(2); e(7); e(8); c(3)
        if not isA and t % 4 == 3 and t < 63: a("v_add_u32 v9, v10, v9")
        e(9); e(10)
        a(mf32(V(OX,16), V(V1,4), V(X,4), "0" if t == 0 else V(OX,16)))
        if isA:
            a(f"s_waitcnt lgkmcnt({1 if t < 63 else 0})")
            issue(0); setup(1)
        elif t < 63: rdV(t+1, 0)
        c(4); e(11); e(12); c(5); e(13); e(14); c(6); e(15)
    a("L_k2_main:")
    for t in range(64):
        if STP:
            if t in STP: stamp(a, 1 + STP.index(t))
        elif t == 16: stamp(a, 3)
        phase(t, True); phase(t, False)
    if STP: stamp(a, 6)
    else: stamp(a, 4)
    a(f"v_rcp_f32 v101, v{OA+8}")
    a(f"v_cvt_pk_bf16_f32 v{SB+11}, v{SB+14}, v{SB+15}")
    for r in range(2): a(f"v_mul_f32 v{OA+r}, v101, v{OA+r}")
    a(mf32(V(OB,16), V(V2,4), V(SB+8,4), V(OB,16)))
    for r in range(2, 8): a(f"v_mul_f32 v{OA+r}, v101, v{OA+r}")
    a("L_k2_tail:")
    for r in range(4): a(f"v_cvt_pk_bf16_f32 v{OA+r}, v{OA+2*r}, v{OA+2*r+1}")
    a(f"ds_write_b128 v11, {V(OA,4)}")
    a(f"v_rcp_f32 v101, v{OB+8}")
    for r in range(8): a(f"v_mul_f32 v{OB+r}, v101, v{OB+r}")
    for r in range(4): a(f"v_cvt_pk_bf16_f32 v{OB+r}, v{OB+2*r}, v{OB+2*r+1}")
    a(f"ds_write_b128 v11, {V(OB,4)} offset:1024")
    vq.wait("wo35", "mod", extra=" lgkmcnt(0)")
    a("s_barrier")
    if not STP: stamp(a, 5)
    ACC, BR, NB = 16, 48, 13
    GA, SBm, CB = 208, 224, 240
    lq = []
    def lds(txt, tag): a(txt); lq.append(tag)
    def lwait(tag):
        n = len(lq) - 1 - max(i for i, x in enumerate(lq) if x == tag)
        return f"lgkmcnt({min(n, 15)})"
    def rdB(S): lds(f"ds_read_b128 {V(BR+4*(S%NB),4)}, v12 offset:{512*S}", f"B{S}")
    for S in range(4): rdB(S)
    nextB = 4
    for S in range(16):
        for nt in range(8):
            i = S*8 + nt
            w = []
            if nt == 0: w.append(lwait(f"B{S}"))
            elif i >= NREG and i % 2 == 0: w.append(lwait(f"wo{i+1}"))
            if i == NREG: w = [lwait(f"wo{i+1}")]
            if nt == 0 and i >= NREG: w = [lwait(f"wo{i+1}")]
            if i == 64: w.append("vmcnt(0)")
            if w: a("s_waitcnt " + " ".join(w))
            src = wo_reg(i) if i < NREG else wo_reg(i - NREG + 36)
            a(mf16(V(ACC+4*nt,4), U(src,4), V(BR+4*(S%NB),4), "0" if S == 0 else V(ACC+4*nt,4)))
            if i % 2 == 0 and nextB < NB: rdB(nextB); nextB += 1
            elif nt == 7 and NB <= nextB < 16 and S >= nextB - NB: rdB(nextB); nextB += 1
            elif 40 <= i < 64 and i % 2 == 0:
                k = (i - 40)//2
                lds(f"ds_read_b128 {V(GA+4*k,4)}, v14 offset:{2048*(k//4) + 64*(k%4)}", "m")
            elif 64 <= i < 64 + 128 - NREG:
                k = i - 64
                ad = (k//4)*16384 + (k % 4)*1024
                lds(f"ds_read_b128 {U(wo_reg(36+k),4)}, v{3 if ad < 65536 else 0} offset:{ad % 65536}", f"wo{NREG+k}")
    assert nextB == 16
    if not STP: stamp(a, 6)
    T = 64
    P = 80
    a("v_and_b32 v8, 8, v2\nv_cmp_ne_u32 vcc, 0, v8")
    for p in range(8):
        a(f"v_lshlrev_b32 v{T+2*p}, 16, v{XR+p}\nv_and_b32 v{T+2*p+1}, 0xffff0000, v{XR+p}")
    for k in range(16): a(f"v_cndmask_b32 v{ACC+k}, v{ACC+k}, v{ACC+16+k}, vcc")
    for p in range(8):
        a(f"v_pk_fma_f32 {V(T+2*p,2)}, {V(ACC+2*p,2)}, {V(GA+2*p,2)}, {V(T+2*p,2)}")
    for p in range(8): a(f"v_cvt_pk_bf16_f32 v{P+p}, v{T+2*p}, v{T+2*p+1}")
    a("s_mov_b32 s33, 0x3f803f80")
    for p in range(8):
        a(f"v_dot2_f32_bf16 v100, v{P+p}, s33, {'0' if p == 0 else 'v100'}")
        a(f"v_dot2_f32_bf16 v101, v{P+p}, v{P+p}, {'0' if p == 0 else 'v101'}")
    for nt in range(4):
        vq.issue(f"buffer_store_dwordx2 {V(P+2*nt,2)}, v15, s[20:23], s67 offen offset:{1024*nt} {K2ST}", "x1")
    a(f"""
    v_add_f32_dpp v100, v100, v100 row_ror:8 {DPPM}
    v_add_f32_dpp v101, v101, v101 row_ror:8 {DPPM}
    v_mov_b32 v102, v100
    v_mov_b32 v103, v101
    v_permlane16_swap_b32 v100, v102
    v_permlane16_swap_b32 v101, v103
    v_add_f32 v100, v100, v102
    v_add_f32 v101, v101, v103
    v_mov_b32 v102, v100
    v_mov_b32 v103, v101
    v_permlane32_swap_b32 v100, v102
    v_permlane32_swap_b32 v101, v103
    v_add_f32 v100, v100, v102
    v_add_f32 v101, v101, v103
    ds_write_b64 v4, v[100:101]
    """)
    for p in range(8):
        a(f"v_lshlrev_b32 v{T+2*p}, 16, v{P+p}\nv_and_b32 v{T+2*p+1}, 0xffff0000, v{P+p}")
    a(f"""
    s_waitcnt lgkmcnt(0)
    s_barrier
    ds_read_b128 v[88:91], v5
    ds_read_b128 v[92:95], v5 offset:16
    s_mov_b32 s33, {f32bits(1.0/512):#x}
    s_mov_b32 s34, {f32bits(1e-5):#x}
    s_waitcnt lgkmcnt(0)
    v_pk_add_f32 v[88:89], v[88:89], v[90:91]
    v_pk_add_f32 v[92:93], v[92:93], v[94:95]
    v_pk_add_f32 v[88:89], v[88:89], v[92:93]
    v_mul_f32 v88, s33, v88
    v_mul_f32 v89, s33, v89
    v_fma_f32 v89, -v88, v88, v89
    v_max_f32 v89, 0, v89
    v_add_f32 v89, s34, v89
    v_rsq_f32 v90, v89
    v_mul_f32 v92, -v88, v90
    """)
    for p in range(8):
        a(f"v_pk_fma_f32 {V(T+2*p,2)}, {V(T+2*p,2)}, v[90:91], v[92:93] op_sel_hi:[1,0,0]")
    for p in range(8):
        a(f"v_pk_fma_f32 {V(T+2*p,2)}, {V(T+2*p,2)}, {V(CB+2*p,2)}, {V(SBm+2*p,2)}")
    for p in range(8): a(f"v_cvt_pk_bf16_f32 v{ACC+p}, v{T+2*p}, v{T+2*p+1}")
    for nt in range(4):
        a(f"buffer_store_dwordx2 {V(ACC+2*nt,2)}, v15, s[20:23], s66 offen offset:{1024*nt} {K2ST}")
    fin(a)
    CA_, CB_ = 112, 128
    a("L_k2_slow:\ns_waitcnt vmcnt(0) lgkmcnt(0)")
    vq_save = vq.q; vq.q = []
    for e in ev_kv + ev_misc: ev(e)
    a("s_waitcnt vmcnt(0)\ns_barrier\ns_barrier")
    a("v_mov_b32 v100, 0xff800000\nv_mov_b32 v101, 0xff800000\ns_mov_b32 s33, 0")
    a("L_k2_slow1:")
    a(f"buffer_load_dwordx4 {V(KF,4)}, v7, s[24:27], s33 offen\ns_waitcnt vmcnt(0)")
    a(mf32(V(SA,16), V(KF,4), V(QA,4), "0")); a(mf32(V(SB,16), V(KF,4), V(QB,4), "0"))
    for r in range(8): a(f"v_max3_f32 v100, v{SA+2*r}, v{SA+2*r+1}, v100")
    for r in range(8): a(f"v_max3_f32 v101, v{SB+2*r}, v{SB+2*r+1}, v101")
    a("""
    s_add_u32 s33, s33, 2048
    s_cmp_lt_u32 s33, 131072
    s_cbranch_scc1 L_k2_slow1
    v_mov_b32 v102, v100
    v_mov_b32 v103, v101
    v_permlane32_swap_b32 v100, v102
    v_permlane32_swap_b32 v101, v103
    v_max_f32 v100, v100, v102
    v_max_f32 v101, v101, v103
    """)
    for r in range(16):
        a(f"v_sub_f32 v{CA_+r}, 0, v100\nv_sub_f32 v{CB_+r}, 0, v101\nv_mov_b32 v{OA+r}, 0\nv_mov_b32 v{OB+r}, 0")
    for r in range(8): a(f"v_mov_b32 v{V1+r}, 0x3f803f80")
    a("""
    s_mov_b32 s33, 0
    s_mov_b32 s34, 0x0000ffff
    s_mov_b32 s35, 0x0000ffff
    L_k2_slow2:
    """)
    a(f"""
    buffer_load_dwordx4 {V(KF,4)}, v7, s[24:27], s33 offen
    s_mov_b64 exec, s[34:35]
    buffer_load_dwordx4 {V(V1,4)}, v9, s[24:27], s33 offen
    buffer_load_dwordx4 {V(V2,4)}, v9, s[24:27], s33 offen offset:512
    s_mov_b64 exec, -1
    s_waitcnt vmcnt(0)
    """)
    a(mf32(V(SA,16), V(KF,4), V(QA,4), V(CA_,16))); a(mf32(V(SB,16), V(KF,4), V(QB,4), V(CB_,16)))
    for X, O in ((SA, OA), (SB, OB)):
        for r in range(16): a(f"v_exp_f32 v{X+r}, v{X+r}")
        for j in range(8):
            d = X+j if j < 4 else X+8+j-4
            a(f"v_cvt_pk_bf16_f32 v{d}, v{X+2*j}, v{X+2*j+1}")
        a(mf32(V(O,16), V(V1,4), V(X,4), V(O,16))); a(mf32(V(O,16), V(V2,4), V(X+8,4), V(O,16)))
    a("""
    s_nop 7
    s_nop 7
    s_add_u32 s33, s33, 2048
    s_cmp_lt_u32 s33, 131072
    s_cbranch_scc1 L_k2_slow2
    s_barrier
    s_barrier
    """)
    for k, e in enumerate(ev_wo + ev_late + ev_x):
        ev(e)
        if k % 32 == 31: a("s_waitcnt vmcnt(0)")
    a("s_waitcnt vmcnt(0)")
    vq.q = vq_save
    a(f"v_rcp_f32 v101, v{OA+8}")
    for r in range(8): a(f"v_mul_f32 v{OA+r}, v101, v{OA+r}")
    a("s_branch L_k2_tail")
    kernel_end(a, name, fall=False)
    return name, 256, 256, K2_LDS, descriptor(name, 512, 256)

def addrB(cb): return 131072 + cb*6400 if cb < 5 else (cb-5)*6400
def k3(a):
    name = "k3_glu_kernel"
    kernel_begin(a, name, 256)
    vq = VMQ(a)
    ACC, AR, NA, TMP = 32, 144, 8, 176
    VA, VB, SA_, SBv = 8, 16, 20, 22
    a(f"""
    s_load_dwordx2 s[8:9], s[0:1], {KA_WS}
    s_load_dwordx4 s[12:15], s[0:1], {KA_WG}
    v_lshrrev_b32 v1, 6, v0
    v_and_b32 v2, 63, v0
    v_readfirstlane_b32 s3, v1
    s_and_b32 s32, s2, 1
    s_lshl_b32 s32, s32, 3
    s_bfe_u32 s33, s2, 0x30003
    s_add_u32 s32, s32, s33          ; rb
    s_bfe_u32 s33, s2, 0x20001
    s_lshl_b32 s33, s33, 2
    s_lshr_b32 s34, s2, 6
    s_add_u32 s33, s33, s34          ; fb
    v_lshlrev_b32 v7, 4, v2
    v_lshrrev_b32 v3, 3, v2
    v_bfe_u32 v4, v2, 4, 1           ; (row>>1)&1
    v_bfe_u32 v5, v2, 1, 2           ; pair
    v_xor_b32 v5, v5, v4
    v_and_b32 v6, 1, v2
    v_mul_u32_u24 v3, 3584, v3
    v_lshl_add_u32 v3, v6, 4, v3
    v_lshl_add_u32 v{SA_}, v5, 5, v3
    v_xor_b32 v5, 2, v5
    v_lshl_add_u32 v{SA_+1}, v5, 5, v3
    s_lshl_b32 s35, s32, 2
    s_add_u32 s35, s35, s3
    s_lshl_b32 s36, s35, 15
    s_add_u32 s36, s36, {WS_H2}      ; h2 fragments
    s_mul_i32 s44, s3, {16*3584}
    s_lshl_b32 s45, s33, 7
    s_add_u32 s44, s44, s45
    s_lshl_b32 s40, s3, 12           ; w*4096
    s_waitcnt lgkmcnt(0)
    """)
    srd(a, 20, 8, WS_END)
    if TOUCH:
        a(f"""
        s_lshr_b32 s46, s2, 3
        s_lshl_b32 s46, s46, 2
        s_add_u32 s46, s46, s3
        s_lshl_b32 s46, s46, 13
        s_and_b32 s47, s2, 1
        s_lshl_b32 s47, s47, 20
        s_add_u32 s46, s46, s47
        s_add_u32 s46, s46, {WS_H2}
        v_lshlrev_b32 v28, 7, v2
        """)
        vq.issue("buffer_load_dword v29, v28, s[20:23], s46 offen", "pf")
    srd(a, 24, 12, 512*3584)
    srd(a, 28, 14, 512*3584)
    def slotA(c):
        L = []
        L.append(lambda: a(f"s_add_u32 s46, s44, {c*64*3584}\ns_add_u32 s47, s44, {c*64*3584 + 8*3584}"))
        for m in range(2):
            for hf in range(2):
                L.append(lambda m=m, hf=hf: (a(f"s_add_u32 m0, s40, {c*16384 + m*2048 + hf*1024}"),
                         vq.issue(f"buffer_load_dwordx4 v{SA_+m}, s[{24+4*m}:{27+4*m}], s{46+hf} offen lds", f"c{c}")))
        L.append(lambda: a(f"s_add_u32 s43, s36, {c*4096}"))
        for i in range(4):
            L.append(lambda i=i: vq.issue(f"buffer_load_dwordx4 {R('a', 16*c+4*i, 4)}, v7, s[20:23], s43 offen offset:{1024*i}", f"c{c}"))
        return L
    def slotB(j):
        L = []
        for m in range(2):
            for i in range(3):
                pre = f"s_add_u32 s46, s48, {j*128*3584}\n" if (m, i) == (0, 0) else ""
                L.append(lambda m=m, i=i, pre=pre: (a(pre + f"s_add_u32 m0, s{52+j}, {m*3200 + i*1024}"),
                         vq.issue(f"buffer_load_dwordx4 v{SBv+i}, s[{24+4*m}:{27+4*m}], s46 offen lds", f"b{j}")))
        return L
    for c in range(3):
        for f in slotA(c): f()
    a(f"""
    v_bfe_u32 v3, v2, 4, 1           ; m
    v_lshrrev_b32 v4, 5, v2          ; h
    v_bfe_u32 v5, v2, 2, 2           ; r
    v_and_b32 v6, 3, v2              ; c
    v_lshl_add_u32 v4, v4, 3, v5     ; 8h + r
    v_lshlrev_b32 v25, 3, v6
    v_lshl_add_u32 v26, v4, 7, v25
    v_lshl_add_u32 v26, v3, 11, v26
    v_lshrrev_b32 v5, 1, v5
    v_lshl_add_u32 v5, v3, 1, v5     ; (r>>1) ^ 2m
    v_mad_u32_u24 v27, v4, 48, 0
    v_lshl_add_u32 v27, v27, 1, v25
    v_mul_u32_u24 v3, 3200, v3
    v_add_u32 v{VB}, v27, v3
    v_add_u32 v{VB+1}, 0x10000, v{VB}
    v_add_u32 v{VB+2}, 0x20000, v{VB}
    """)
    for t in range(4):
        a(f"v_xor_b32 v6, {t}, v5\nv_lshl_add_u32 v{VA+t}, v6, 5, v26\nv_add_u32 v{VA+4+t}, 0x10000, v{VA+t}")
    for i in range(3):
        a(f"""
        v_add_u32 v3, {64*i}, v2
        v_mul_u32_u24 v4, 171, v3
        v_lshrrev_b32 v4, 10, v4
        v_mul_u32_u24 v5, 6, v4
        v_sub_u32 v5, v3, v5
        v_mul_u32_u24 v4, 3584, v4
        v_lshl_add_u32 v{SBv+i}, v5, 4, v4
        """)
    a(f"""
    s_mul_i32 s48, s3, {32*3584}
    s_mul_i32 s49, s33, 96
    s_add_u32 s48, s48, s49
    s_add_u32 s48, s48, 2048
    s_mul_i32 s49, s3, 6400
    s_add_u32 s52, s49, 131072
    s_add_u32 s53, s49, {4*6400 - 32000}
    s_cmp_eq_u32 s3, 0
    s_cselect_b32 s53, {addrB(4)}, s53
    s_add_u32 s54, s49, {8*6400 - 32000}
    s_add_u32 s55, s49, {12*6400 - 32000}
    s_mul_i32 s37, s35, 112
    s_lshl_b32 s38, s33, 2
    s_add_u32 s38, s37, s38
    s_mul_i32 s39, s33, 3
    s_add_u32 s39, s39, s37
    s_lshl_b32 s37, s38, 10
    s_add_u32 s37, s37, {WS_HH}
    s_lshl_b32 s38, s39, 10
    s_add_u32 s38, s38, {WS_HH + 65536}
    s_mov_b32 s42, {f32bits(-LOG2E):#x}
    """)
    seq = [(t, s) for s in range(32) for t in range(4)]
    for t in range(4, 7): seq += [(t, s) for s in range(32)]
    def rdA(n):
        t, s = seq[n]
        for q in range(2):
            if t < 4:
                ad = s*4096 + q*512; reg = VA + t + 4*(ad//65536)
            else:
                ad = addrB(s//2) + (s % 2)*1536 + q*384 + (t-4)*32; reg = VB + ad//65536
            a(f"ds_read_b64_tr_b16 {V(AR+4*(n%NA)+2*q,2)}, v{reg} offset:{ad%65536}")
    def epi(g):
        A = ACC + 16*g
        T = TMP + 16*(g % 2)
        ops = []
        for r in range(8): ops.append((4, f"v_mul_f32 v{T+r}, s42, v{A+r}"))
        for r in range(8): ops.append((8, f"v_exp_f32 v{T+r}, v{T+r}"))
        for r in range(8): ops.append((4, f"v_add_f32 v{T+r}, 1.0, v{T+r}"))
        for r in range(8): ops.append((8, f"v_rcp_f32 v{T+r}, v{T+r}"))
        for r in range(8): ops.append((4, f"v_mul_f32 v{T+r}, v{T+r}, v{A+8+r}"))
        for r in range(4): ops.append((4, f"v_cvt_pk_bf16_f32 v{T+8+r}, v{T+2*r}, v{T+2*r+1}"))
        ops.append((4, f"buffer_store_dwordx4 {V(T+8,4)}, v7, s[20:23], s{37 + g//4} offen offset:{1024*(g%4)} {HHST}"))
        return ops
    stamp(a, 1)
    vq.wait("c0"); a("s_barrier")
    stamp(a, 2)
    LA = 6
    for n in range(LA): rdA(n)
    pend = []
    eq = []
    N = len(seq)
    allB = slotB(0) + slotB(1) + slotB(2) + slotB(3)
    for n in range(N):
        t, s = seq[n]
        if n == 128: stamp(a, 3)
        if n < 80 and n % 16 == 0: pend = slotA(n//16 + 3)
        if n in (80, 96, 112): pend = allB[:8]; allB = allB[8:]
        if n == 128 + 3:
            for g in range(4): eq += epi(g)
        if n == 160 + 3: eq += epi(4)
        if n == 192 + 3: eq += epi(5)
        a(f"s_waitcnt lgkmcnt({2*min(LA-1, N-1-n)})")
        a(mf32(V(ACC+16*t,16), V(AR+4*(n%NA),4), R('a', 4*s, 4), "0" if s == 0 else V(ACC+16*t,16)))
        nx = n + LA
        if nx < 128 and nx % 16 == 0:
            vq.wait(f"c{nx//16}"); a("s_barrier")
        if nx == 128: vq.wait("b0", "b1"); a("s_barrier")
        if nx == 144: vq.wait("b2", "b3"); a("s_barrier")
        if nx < N: rdA(nx)
        if pend and n % 16 < 10: pend.pop(0)()
        bud = 16
        while eq and eq[0][0] <= bud:
            cst, txt = eq.pop(0); bud -= cst
            if txt.startswith("buffer"): vq.issue(txt, "st")
            else: a(txt)
    assert not pend, len(pend)
    stamp(a, 4)
    for cst, txt in eq + epi(6): a(txt)
    kernel_end(a, name)
    return name, 256, 256, 163840, descriptor(name, 384, 256)

def k4(a):
    name = "k4_down_kernel"
    kernel_begin(a, name, 256)
    vq = VMQ(a)
    ACC = 16
    X1, GB = 80, 88
    AF = 104
    DEP, RING = 15, 20
    a(f"""
    s_load_dwordx2 s[8:9], s[0:1], {KA_WS}
    s_load_dwordx2 s[4:5], s[0:1], {KA_OUT}
    s_load_dwordx2 s[6:7], s[0:1], {KA_WD}
    v_lshrrev_b32 v1, 6, v0
    v_and_b32 v2, 63, v0
    v_readfirstlane_b32 s3, v1
    s_and_b32 s32, s2, 3
    s_lshl_b32 s32, s32, 3
    s_bfe_u32 s33, s2, 0x30003
    s_add_u32 s32, s32, s33          ; tb
    s_bfe_u32 s33, s2, 0x10002
    s_lshl_b32 s33, s33, 2
    s_lshr_b32 s34, s2, 6
    s_add_u32 s33, s33, s34          ; nb
    v_lshlrev_b32 v7, 4, v2
    v_lshrrev_b32 v3, 3, v2
    v_bfe_u32 v4, v2, 4, 1
    v_and_b32 v5, 7, v2
    v_lshlrev_b32 v4, 2, v4
    v_xor_b32 v5, v5, v4
    v_lshlrev_b32 v3, 10, v3
    v_lshl_add_u32 v8, v5, 4, v3
    v_add_u32 v9, 8192, v8           ; rows 8..15
    s_mul_i32 s35, s3, 28            ; first G
    s_lshl_b32 s36, s35, 14
    s_lshl_b32 s37, s33, 7
    s_add_u32 s36, s36, s37
    s_mul_i32 s37, s32, 224
    s_add_u32 s37, s37, s35
    s_lshl_b32 s37, s37, 10
    s_add_u32 s37, s37, {WS_HH}
    s_add_u32 s38, s37, {112*1024}
    s_mul_i32 s39, s3, 40960
    s_waitcnt lgkmcnt(0)
    """)
    srd(a, 20, 8, WS_END)
    if TOUCH:
        a(f"""
        s_lshr_b32 s46, s2, 3
        s_lshl_b32 s46, s46, 2
        s_add_u32 s46, s46, s3
        s_mul_i32 s46, s46, {112*128}
        s_and_b32 s47, s2, 3
        s_mul_i32 s47, s47, {16*112*1024}
        s_add_u32 s46, s46, s47
        s_add_u32 s46, s46, {WS_HH}
        s_add_u32 s47, s46, {56*128}
        v_min_u32 v13, 55, v2
        v_lshlrev_b32 v13, 7, v13
        """)
        vq.issue("buffer_load_dword v14, v13, s[20:23], s46 offen", "pf")
        vq.issue("buffer_load_dword v14, v13, s[20:23], s47 offen", "pf")
    srd(a, 28, 6, 1792*1024)
    def F(g, k): return 256 + 8*(g % (DEP+1)) + 4*k
    def loads(g):
        L = []
        for hf in range(2):
            pre = "s_add_u32 s36, s36, 16384\n" if (hf == 0 and g) else ""
            L.append(lambda hf=hf, pre=pre: (a(pre + f"s_add_u32 m0, s39, {(g%RING)*2048 + hf*1024}"),
                     vq.issue(f"buffer_load_dwordx4 v{8+hf}, s[28:31], s36 offen lds", f"g{g}")))
        for tk in range(2):
            pre = f"s_add_u32 s{37+tk}, s{37+tk}, 4096\n" if (g % 4 == 0 and g) else ""
            L.append(lambda tk=tk, pre=pre: (a(pre), vq.issue(f"buffer_load_dwordx4 {U(F(g,tk),4)}, v7, s[20:23], s{37+tk} offen offset:{(g%4)*1024}", f"g{g}")))
        return L
    for g in range(DEP):
        for f in loads(g): f()
    srd(a, 24, 4, 2048*512*2)
    a(f"""
    s_lshr_b32 s40, s3, 1            ; tk
    s_and_b32 s41, s3, 1             ; e
    s_lshl_b32 s42, s32, 1
    s_add_u32 s42, s42, s40
    s_lshl_b32 s43, s33, 2
    s_lshl_b32 s44, s41, 1
    s_add_u32 s43, s43, s44
    s_lshl_b32 s44, s42, 15
    s_lshl_b32 s45, s43, 10
    s_add_u32 s45, s45, s44
    s_add_u32 s45, s45, {WS_X1}
    s_lshl_b32 s46, s43, 6
    s_add_u32 s46, s46, {WS_MOD + 5*2048}
    s_lshl_b32 s47, s43, 5
    s_add_u32 s47, s47, s44
    v_lshrrev_b32 v1, 5, v2          ; h
    v_bfe_u32 v3, v2, 2, 2           ; r
    v_lshl_add_u32 v4, v1, 2, v3
    v_lshlrev_b32 v4, 7, v4          ; (4h + r)*128
    v_bfe_u32 v5, v2, 4, 1
    v_lshl_add_u32 v4, v5, 5, v4
    v_and_b32 v5, 1, v2
    v_lshl_add_u32 v4, v5, 4, v4
    v_bfe_u32 v5, v2, 1, 1
    v_lshl_add_u32 v4, v5, 3, v4
    v_add_u32 v4, s39, v4
    v_lshrrev_b32 v3, 1, v3
    v_lshl_add_u32 v10, v3, 6, v4    ; e = 0
    v_xor_b32 v3, 1, v3
    v_lshl_add_u32 v11, v3, 6, v4    ; e = 1
    v_lshlrev_b32 v3, 5, v1
    v_and_b32 v4, 31, v2
    v_lshlrev_b32 v4, 10, v4
    v_lshl_add_u32 v4, v1, 4, v4
    v_add_u32 v5, s39, v7
    s_lshl_b32 s48, s3, 12
    v_add_u32 v6, s48, v7
    v_add_u32 v12, {2*40960}, v6
    """)
    def tr(g):
        for e in range(2):
            for q in range(2):
                a(f"ds_read_b64_tr_b16 {V(AF+8*(g%2)+4*e+2*q,2)}, v{10+e} offset:{(g%RING)*2048 + q*1024}")
    stamp(a, 1)
    vq.wait("g0")
    stamp(a, 2)
    tr(0)
    for g in range(28):
        if g < 27:
            vq.wait(f"g{g+1}"); tr(g+1)
        a(f"s_waitcnt lgkmcnt({4 if g < 27 else 0})")
        pend = loads(g + DEP) if g + DEP < 28 else []
        for tk in range(2):
            for e in range(2):
                acc = V(ACC + 32*tk + 16*e, 16)
                a(mf32(acc, V(AF+8*(g%2)+4*e,4), U(F(g,tk),4), "0" if g == 0 else acc))
                if pend: pend.pop(0)()
        if g == 28 - DEP:
            for qd in range(2):
                vq.issue(f"buffer_load_dwordx4 {V(X1+4*qd,4)}, v7, s[20:23], s45 offen offset:{1024*qd}", "e")
                for hf in range(2):
                    vq.issue(f"buffer_load_dwordx4 {V(GB+8*qd+4*hf,4)}, v3, s[20:23], s46 offen offset:{64*qd+16*hf}", "e")
    stamp(a, 3)
    for o in range(4):
        for k in range(4):
            a(f"ds_write_b128 v5, {V(ACC+16*o+4*k,4)} offset:{o*4096 + k*1024}")
    a("s_waitcnt lgkmcnt(0)\ns_barrier")
    RD = 128
    for src in range(4):
        for k in range(4):
            a(f"ds_read_b128 {V(RD+16*src+4*k,4)}, v{6 if src < 2 else 12} offset:{(src%2)*40960 + k*1024}")
    T = 16
    vq.wait("e")
    for p in range(8):
        a(f"v_lshlrev_b32 v{T+2*p}, 16, v{X1+p}\nv_and_b32 v{T+2*p+1}, 0xffff0000, v{X1+p}")
    a("s_waitcnt lgkmcnt(8)")
    for k in range(8): a(f"v_pk_add_f32 {V(RD+2*k,2)}, {V(RD+2*k,2)}, {V(RD+16+2*k,2)}")
    a("s_waitcnt lgkmcnt(0)")
    for k in range(8): a(f"v_pk_add_f32 {V(RD+32+2*k,2)}, {V(RD+32+2*k,2)}, {V(RD+48+2*k,2)}")
    for k in range(8): a(f"v_pk_add_f32 {V(RD+2*k,2)}, {V(RD+2*k,2)}, {V(RD+32+2*k,2)}")
    for k in range(8): a(f"v_pk_fma_f32 {V(T+2*k,2)}, {V(GB+2*k,2)}, {V(RD+2*k,2)}, {V(T+2*k,2)}")
    for p in range(8): a(f"v_cvt_pk_bf16_f32 v{T+16+p}, v{T+2*p}, v{T+2*p+1}")
    for qd in range(2):
        a(f"buffer_store_dwordx4 {V(T+16+4*qd,4)}, v4, s[24:27], s47 offen offset:{32*qd}")
    kernel_end(a, name)
    return name, 256, 256, 163840, descriptor(name, 384, 256)

def main():
    log = build([k0, k1, k2, k3, k4], os.environ.get("OUT", "dbg.s") if DBG else f"cdna_kernels/{NAME}.s")
    for l in log: print(l)
```

```python
import sys
from asmlib import *
import hazard

NAME = "adaLN_cond__grouped_kv_mqa__glu_gated_glu__prompt"
KA_X, KA_WQ, KA_WK, KA_WV, KA_WO, KA_BX, KA_WG, KA_WU, KA_WD, KA_C, KA_WMOD, KA_OUT, KA_DBG, KA_WS = [8*i for i in range(14)]
WS_MOD = 0x0
WS_KN  = 0x4000
WS_WQ  = 0x10000
WS_WKV = 0x90000
WS_WO  = 0xA0000
WS_KV  = 0x120000
WS_Q   = 0x200000
WS_X1  = 0x400000
WS_H2  = 0x600000
WS_WGU = 0x800000
WS_WD  = 0xC00000
WS_HH  = 0x1000000
import os
DBG = bool(os.environ.get("DBG"))
WS_TIM = 0x1800000
WS_END = 0x1900000 if DBG else 0x1800000
KIDX = {}
LOG2E = 1.4426950408889634

class VMQ:
    def __init__(self, a): self.a = a; self.q = []
    def issue(self, text, tag): self.a(text); self.q.append(tag)
    def count(self, tags):
        last = max(i for i, t in enumerate(self.q) if t in tags)
        return len(self.q) - 1 - last
    def wait(self, *tags, extra=""):
        n = self.count(tags)
        assert n <= 63, n
        self.a(f"s_waitcnt vmcnt({n}){extra}")

def srd(a, d, base, nbytes, off=0):
    if off:
        a(f"s_add_u32 s{d}, s{base}, {off}\ns_addc_u32 s{d+1}, s{base+1}, 0")
    else:
        a(f"s_mov_b32 s{d}, s{base}\ns_mov_b32 s{d+1}, s{base+1}")
    a(f"s_mov_b32 s{d+2}, {nbytes}\ns_mov_b32 s{d+3}, 0x00020000")

def kernel_begin(a, name, nwg):
    a(f".globl {name}\n.p2align 8\n.type {name},@function\n{name}:")
    a(f"s_cmp_ge_u32 s2, {nwg}\ns_cbranch_scc1 L_end_{name}")
    KIDX["cur"] = KIDX.get("cur", -1) + 1
    if DBG:
        a("s_memrealtime s[76:77]\ns_memtime s[80:81]")
        for i in range(1, 8): a(f"s_mov_b32 s{80+2*i}, 0")

def stamp(a, i):
    if DBG: a(f"s_memtime s[{80+2*i}:{81+2*i}]")

def fin(a):
    if DBG:
        k = KIDX["cur"]
        a(f"""
        s_waitcnt vmcnt(0)
        s_memtime s[94:95]
        s_memrealtime s[78:79]
        s_lshl_b32 s75, s2, 2
        s_add_u32 s75, s75, s3
        s_lshl_b32 s75, s75, 6
        s_add_u32 s75, s75, {WS_TIM + 0x10000*k}
        s_mov_b64 exec, 1
        v_mov_b32 v1, 0
        s_waitcnt lgkmcnt(0)
        """)
        a("s_getreg_b32 s74, hwreg(HW_REG_XCC_ID, 0, 4)")
        for i, r in enumerate([76, 78] + [80+2*j for j in range(8)] + [74]):
            a(f"v_mov_b32 v0, s{r}\nbuffer_store_dword v0, v1, s[20:23], s75 offen offset:{4*i}")
    a("s_endpgm")

def kernel_end(a, name, fall=True):
    if fall: fin(a)
    a(f"L_end_{name}:\ns_endpgm")

def descriptor(name, vgpr, accum, sgpr=96):
    return f""".amdhsa_kernel {name}
  .amdhsa_next_free_vgpr {vgpr}
  .amdhsa_next_free_sgpr {sgpr}
  .amdhsa_accum_offset {accum}
  .amdhsa_group_segment_fixed_size 0
  .amdhsa_kernarg_size 112
  .amdhsa_user_sgpr_count 2
  .amdhsa_user_sgpr_kernarg_segment_ptr 1
  .amdhsa_system_sgpr_workgroup_id_x 1
.end_amdhsa_kernel
"""

DPPM = "row_mask:0xf bank_mask:0xf"

def code_prefetch(a, first, last, vd):
    if os.environ.get("NOPF"): return
    lab = a.label("pc")
    a(f"""
    s_getpc_b64 s[48:49]
    {lab}:
    s_add_u32 s48, s48, {first}-{lab}
    s_addc_u32 s49, s49, 0
    s_mov_b32 s50, {last}-{first}
    s_mov_b32 s51, 0x00020000
    s_lshr_b32 s52, s2, 3
    s_lshl_b32 s52, s52, 2
    s_add_u32 s52, s52, s3
    s_lshl_b32 s52, s52, 10
    v_lshlrev_b32 v{vd}, 4, v2
    buffer_load_dwordx4 v[{vd}:{vd+3}], v{vd}, s[48:51], s52 offen
    """)

def k0(a):
    name = "k0_mod_kernel"
    kernel_begin(a, name, 256)
    a(f"""
    s_load_dwordx4 s[4:7], s[0:1], {KA_C}
    s_load_dwordx2 s[8:9], s[0:1], {KA_WS}
    s_load_dwordx4 s[12:15], s[0:1], {KA_WQ}
    s_load_dwordx2 s[16:17], s[0:1], {KA_WV}
    v_lshrrev_b32 v1, 6, v0
    v_and_b32 v2, 63, v0
    v_readfirstlane_b32 s3, v1
    """)
    code_prefetch(a, "k1_qkv_kernel", "L_code_end", 60)
    a("s_waitcnt lgkmcnt(0)")
    srd(a, 20, 8, WS_END)
    a("s_cmp_ge_u32 s2, 192\ns_cbranch_scc1 L_k0_shuf")
    srd(a, 24, 6, 512*3072*2)
    srd(a, 28, 4, 1024)
    a(f"""
    s_and_b32 s32, s2, 7
    s_lshr_b32 s33, s2, 3
    s_mul_i32 s32, s32, 6
    s_lshr_b32 s34, s33, 2
    s_add_u32 s32, s32, s34
    s_lshl_b32 s32, s32, 6
    s_and_b32 s33, s33, 3
    s_lshl_b32 s33, s33, 4
    s_add_u32 s32, s32, s33          ; col0
    s_lshl_b32 s36, s32, 1
    s_add_u32 s37, s36, {128*6144}
    s_add_u32 s38, s36, {256*6144}
    s_add_u32 s39, s36, {384*6144}
    v_lshrrev_b32 v3, 1, v0          ; row0
    v_and_b32 v4, 1, v0
    v_mul_u32_u24 v5, 6144, v3
    v_lshl_add_u32 v5, v4, 4, v5
    v_lshlrev_b32 v6, 1, v3
    """)
    for j in range(4):
        a(f"buffer_load_ushort v{8+j}, v6, s[28:31], 0 offen offset:{256*j}")
    for j in range(4):
        a(f"buffer_load_dwordx4 v[{16+4*j}:{19+4*j}], v5, s[24:27], s{36+j} offen")
    stamp(a, 1)
    a("s_waitcnt vmcnt(4)")
    stamp(a, 2)
    a(f"s_mov_b32 s40, {f32bits(-LOG2E):#x}")
    for j in range(4): a(f"v_lshlrev_b32 v{8+j}, 16, v{8+j}")
    for j in range(4): a(f"v_mul_f32 v{12+j}, s40, v{8+j}")
    for j in range(4): a(f"v_exp_f32 v{12+j}, v{12+j}")
    for j in range(4): a(f"v_add_f32 v{12+j}, 1.0, v{12+j}")
    for j in range(4): a(f"v_rcp_f32 v{12+j}, v{12+j}")
    for j in range(4): a(f"v_mul_f32 v{8+j}, v{8+j}, v{12+j}")
    for j in range(4): a(f"v_cvt_pk_bf16_f32 v{8+j}, v{8+j}, v{8+j}")
    for j in range(4): a(f"v_lshlrev_b32 v{8+j}, 16, v{8+j}")
    for j in range(4):
        a(f"s_waitcnt vmcnt({3-j})")
        for p in range(4):
            a(f"v_lshlrev_b32 v{40+2*p}, 16, v{16+4*j+p}")
            a(f"v_and_b32 v{41+2*p}, 0xffff0000, v{16+4*j+p}")
        for e in range(8):
            if j == 0: a(f"v_mul_f32 v{32+e}, v{8+j}, v{40+e}")
            else: a(f"v_fmac_f32 v{32+e}, v{8+j}, v{40+e}")
    stamp(a, 3)
    for sh in (2, 4, 8):
        for e in range(8):
            a(f"v_add_f32_dpp v{32+e}, v{32+e}, v{32+e} row_ror:{sh} {DPPM}")
    a(f"""
    v_lshrrev_b32 v3, 4, v0
    v_lshlrev_b32 v3, 6, v3
    v_lshl_add_u32 v3, v4, 5, v3
    v_and_b32 v7, 14, v0
    v_cmp_eq_u32 vcc, 0, v7
    s_and_saveexec_b64 s[42:43], vcc
    ds_write_b128 v3, v[32:35]
    ds_write_b128 v3, v[36:39] offset:16
    s_mov_b64 exec, s[42:43]
    s_waitcnt lgkmcnt(0)
    s_barrier
    s_cmp_lg_u32 s3, 0
    s_cbranch_scc1 L_k0_fin
    v_and_b32 v3, 15, v0
    v_lshlrev_b32 v3, 2, v3
    """)
    for r in range(8):
        a(f"ds_read2_b32 v[{16+2*r}:{17+2*r}], v3 offset0:{32*r} offset1:{32*r+16}")
    a("s_waitcnt lgkmcnt(0)")
    for r in range(8): a(f"v_add_f32 v{16+2*r}, v{16+2*r}, v{17+2*r}")
    for r in range(4): a(f"v_add_f32 v{16+4*r}, v{16+4*r}, v{18+4*r}")
    a("v_add_f32 v16, v16, v20\nv_add_f32 v24, v24, v28\nv_add_f32 v16, v16, v24")
    a(f"""
    v_cvt_pk_bf16_f32 v16, v16, v16
    v_lshlrev_b32 v16, 16, v16
    s_lshr_b32 s33, s32, 9
    s_cmp_eq_u32 s33, 1
    s_cselect_b32 s34, 1.0, 0
    s_cmp_eq_u32 s33, 4
    s_cselect_b32 s34, 1.0, s34
    v_add_f32 v16, s34, v16
    v_cvt_pk_bf16_f32 v16, v16, v16
    v_lshlrev_b32 v16, 16, v16
    s_lshl_b32 s35, s32, 2
    v_cmp_gt_u32 vcc, 16, v0
    s_and_saveexec_b64 s[42:43], vcc
    buffer_store_dword v16, v3, s[20:23], s35 offen
    L_k0_fin:
    """)
    fin(a)
    a("L_k0_shuf:")
    srd(a, 24, 12, 512*512*2)
    a(f"""
    s_sub_u32 s32, s2, 192
    s_lshl_b32 s32, s32, 2
    s_add_u32 s32, s32, s3           ; gw 0..255
    s_and_b32 s33, s32, 31           ; k-step
    s_lshr_b32 s34, s32, 5
    s_lshl_b32 s35, s33, 14
    s_lshl_b32 s36, s34, 7
    s_add_u32 s35, s35, s36
    s_add_u32 s36, s35, 4096
    v_and_b32 v3, 31, v2
    v_lshrrev_b32 v4, 5, v2
    v_lshlrev_b32 v3, 1, v3
    v_lshl_add_u32 v3, v4, 13, v3
    v_lshlrev_b32 v5, 4, v2          ; lane*16
    """)
    for e in range(2):
        for j in range(8):
            a(f"buffer_load_ushort v{16+8*e+j}, v3, s[24:27], s{35+j//4} offen offset:{(j%4)*1024+e*64}")
    a(f"""
    s_cmp_ge_u32 s32, 32
    s_cbranch_scc1 L_k0_nokv
    s_cmp_lt_u32 s32, 16
    s_cselect_b32 s28, s14, s16
    s_cselect_b32 s29, s15, s17
    s_mov_b32 s30, {512*16*2}
    s_mov_b32 s31, 0x00020000
    s_and_b32 s37, s32, 15
    s_lshl_b32 s37, s37, 10
    v_and_b32 v6, 15, v2
    v_lshrrev_b32 v7, 4, v2
    v_lshlrev_b32 v6, 1, v6
    v_lshl_add_u32 v6, v7, 8, v6
    """)
    for j in range(8):
        a(f"buffer_load_ushort v{40+j}, v6, s[28:31], s37 offen offset:{32*j}")
    a("s_waitcnt vmcnt(0)")
    for m in range(4): a(f"v_lshl_or_b32 v{48+m}, v{41+2*m}, 16, v{40+2*m}")
    a(f"""
    s_lshl_b32 s37, s32, 10
    s_add_u32 s37, s37, {WS_WKV}
    buffer_store_dwordx4 v[48:51], v5, s[20:23], s37 offen
    L_k0_nokv:
    s_waitcnt vmcnt(0)
    """)
    for m in range(8): a(f"v_lshl_or_b32 v{32+m}, v{17+2*m}, 16, v{16+2*m}")
    a(f"""
    s_lshl_b32 s35, s34, 16
    s_lshl_b32 s36, s33, 10
    s_add_u32 s35, s35, s36
    s_add_u32 s35, s35, {WS_WQ}
    s_add_u32 s36, s35, 32768
    buffer_store_dwordx4 v[32:35], v5, s[20:23], s35 offen
    buffer_store_dwordx4 v[36:39], v5, s[20:23], s36 offen
    """)
    kernel_end(a, name)
    return name, 256, 256, 1024, descriptor(name, 64, 64)

def k1(a):
    name = "k1_qkv_kernel"
    kernel_begin(a, name, 256)
    vq = VMQ(a)
    a(f"""
    s_load_dwordx2 s[4:5], s[0:1], {KA_X}
    s_load_dwordx2 s[8:9], s[0:1], {KA_WS}
    s_load_dwordx2 s[6:7], s[0:1], {KA_WO}
    v_lshrrev_b32 v1, 6, v0
    v_and_b32 v2, 63, v0
    v_readfirstlane_b32 s3, v1
    s_and_b32 s32, s2, 7
    s_lshr_b32 s33, s2, 3
    s_lshl_b32 s32, s32, 3
    s_lshr_b32 s34, s33, 2
    s_add_u32 s32, s32, s34          ; tt
    s_and_b32 s33, s33, 3            ; ng
    v_and_b32 v3, 15, v2             ; c
    v_lshrrev_b32 v4, 4, v2          ; tq
    v_lshlrev_b32 v5, 4, v3
    v_lshl_add_u32 v5, v4, 10, v5    ; x voffset
    v_lshlrev_b32 v6, 5, v3
    v_lshlrev_b32 v7, 4, v2          ; lane*16
    s_lshl_b32 s35, s32, 15
    s_lshl_b32 s36, s3, 13
    s_add_u32 s35, s35, s36
    s_add_u32 s36, s35, 4096
    s_lshl_b32 s37, s33, 2
    s_add_u32 s37, s37, s3           ; n-tile
    s_lshl_b32 s38, s37, 15
    s_add_u32 s38, s38, {WS_WQ}
    s_waitcnt lgkmcnt(0)
    """)
    srd(a, 24, 4, 2048*512*2)
    srd(a, 20, 8, WS_END)
    X = 16
    for st in range(2):
        for i in range(4):
            vq.issue(f"buffer_load_dwordx4 v[{X+16*st+4*i}:{X+16*st+4*i+3}], v5, s[24:27], s{35+st} offen offset:{256*i}", "x")
    CA, SA = 48, 80
    for i in range(4):
        for hf in range(2):
            vq.issue(f"buffer_load_dwordx4 v[{SA+8*i+4*hf}:{SA+8*i+4*hf+3}], v6, s[20:23], 0 offen offset:{WS_MOD+512*i+16*hf}", "mod")
            vq.issue(f"buffer_load_dwordx4 v[{CA+8*i+4*hf}:{CA+8*i+4*hf+3}], v6, s[20:23], 0 offen offset:{WS_MOD+2048+512*i+16*hf}", "mod")
    for s in range(32):
        if s % 4 == 0 and s: a("s_add_u32 s38, s38, 4096")
        vq.issue(f"buffer_load_dwordx4 a[{4*s}:{4*s+3}], v7, s[20:23], s38 offen offset:{(s%4)*1024}", "w")
    a("s_mov_b32 s40, 0x3f803f80")
    a("v_mov_b32 v8, 0\nv_mov_b32 v9, 0\nv_mov_b32 v10, 0\nv_mov_b32 v11, 0")
    stamp(a, 1)
    vq.wait("x")
    stamp(a, 2)
    for r in range(16):
        for st in range(2):
            a(f"v_dot2_f32_bf16 v{8+2*st}, v{X+16*st+r}, s40, v{8+2*st}")
            a(f"v_dot2_f32_bf16 v{9+2*st}, v{X+16*st+r}, v{X+16*st+r}, v{9+2*st}")
    a(f"""
    s_cmp_eq_u32 s3, 0
    s_cbranch_scc0 L_k1_nokvw
    s_lshr_b32 s41, s33, 1
    s_lshl_b32 s41, s41, 14
    s_add_u32 s41, s41, {WS_WKV}
    """)
    for S in range(16):
        if S % 4 == 0 and S: a("s_add_u32 s41, s41, 4096")
        a(f"buffer_load_dwordx4 a[{128+4*S}:{128+4*S+3}], v7, s[20:23], s41 offen offset:{(S%4)*1024}")
    a("s_branch L_k1_side_done\nL_k1_nokvw:")
    srd(a, 28, 6, 512*512*2)
    a(f"""
    s_and_b32 s42, s2, 15            ; S
    s_lshr_b32 s43, s2, 4
    s_lshl_b32 s43, s43, 1
    s_add_u32 s43, s43, s3
    s_sub_u32 s43, s43, 1
    s_min_u32 s43, s43, 31
    s_lshl_b32 s44, s42, 15
    s_lshl_b32 s45, s43, 5
    s_add_u32 s44, s44, s45
    s_add_u32 s45, s44, 8192
    v_lshrrev_b32 v12, 1, v4
    v_and_b32 v13, 1, v4
    v_lshlrev_b32 v12, 14, v12
    v_lshl_add_u32 v12, v13, 12, v12
    v_lshl_add_u32 v12, v3, 1, v12
    """)
    for j in range(8):
        a(f"buffer_load_ushort v{240+j}, v12, s[28:31], s{44+j//4} offen offset:{(j%4)*1024}")
    a("L_k1_side_done:")
    for sh in (1, 2, 4, 8):
        for e in range(4):
            a(f"v_add_f32_dpp v{8+e}, v{8+e}, v{8+e} row_ror:{sh} {DPPM}")
    a(f"s_mov_b32 s40, {f32bits(1.0/512):#x}\ns_mov_b32 s41, {f32bits(1e-5):#x}")
    for st in range(2):
        m, q = 8+2*st, 9+2*st
        a(f"""
        v_mul_f32 v{m}, s40, v{m}
        v_mul_f32 v{q}, s40, v{q}
        v_fma_f32 v{q}, -v{m}, v{m}, v{q}
        v_max_f32 v{q}, 0, v{q}
        v_add_f32 v{q}, s41, v{q}
        v_rsq_f32 v{q}, v{q}
        """)
    for st in range(2):
        m, q = 8+2*st, 9+2*st
        a(f"v_mov_b32 v{112+4*st}, v{q}\nv_mul_f32 v{114+4*st}, -v{m}, v{q}")
    a(f"""
    v_lshlrev_b32 v12, 9, v3         ; c*512 = (c/2)*1024 + (c%2)*512
    v_and_b32 v13, 7, v3
    v_xor_b32 v14, v4, v13
    v_xor_b32 v15, 4, v14
    s_lshl_b32 s40, s3, 7
    v_lshl_add_u32 v14, v14, 4, v12
    v_lshl_add_u32 v15, v15, 4, v12
    v_add_u32 v14, s40, v14
    v_add_u32 v15, s40, v15
    """)
    a(f"s_waitcnt vmcnt({32+8})")
    stamp(a, 3)
    T = 120
    for st in range(2):
        for i in range(4):
            t = T + 16*((st*4+i) % 2)
            for p in range(4):
                a(f"v_lshlrev_b32 v{t+2*p}, 16, v{X+16*st+4*i+p}")
                a(f"v_and_b32 v{t+2*p+1}, 0xffff0000, v{X+16*st+4*i+p}")
            for p in range(4):
                a(f"v_pk_fma_f32 v[{t+2*p}:{t+2*p+1}], v[{t+2*p}:{t+2*p+1}], v[{112+4*st}:{113+4*st}], v[{114+4*st}:{115+4*st}] op_sel_hi:[1,0,0]")
            for p in range(4):
                a(f"v_pk_fma_f32 v[{t+2*p}:{t+2*p+1}], v[{t+2*p}:{t+2*p+1}], v[{CA+8*i+2*p}:{CA+8*i+2*p+1}], v[{SA+8*i+2*p}:{SA+8*i+2*p+1}]")
            for p in range(4):
                a(f"v_cvt_pk_bf16_f32 v{t+8+p}, v{t+2*p}, v{t+2*p+1}")
            a(f"ds_write_b128 v{14+st}, v[{t+8}:{t+11}] offset:{8192*i}")
    a("v_and_b32 v8, 31, v2\nv_lshrrev_b32 v9, 5, v2")
    for sm in range(4):
        a(f"""
        v_add_u32 v10, {2*sm}, v9
        v_xor_b32 v11, v8, v10
        v_lshlrev_b32 v10, 9, v10
        v_lshl_add_u32 v{16+sm}, v11, 4, v10
        """)
    a("s_waitcnt lgkmcnt(0)\ns_barrier")
    B = 160
    ACC = 192
    def rd(s): a(f"ds_read_b128 v[{B+4*(s%8)}:{B+4*(s%8)+3}], v{16+s%4} offset:{(s//4)*4096}")
    for s in range(8): rd(s)
    stamp(a, 4)
    a("s_waitcnt vmcnt(8)")
    stamp(a, 5)
    for s in range(32):
        a(f"s_waitcnt lgkmcnt({min(7, 31-s)})")
        c = "0" if s == 0 else f"v[{ACC}:{ACC+15}]"
        a(f"v_mfma_f32_32x32x16_bf16 v[{ACC}:{ACC+15}], a[{4*s}:{4*s+3}], v[{B+4*(s%8)}:{B+4*(s%8)+3}], {c}")
        if s + 8 < 32: rd(s+8)
    a(f"""
    v_lshrrev_b32 v10, 3, v8
    v_and_b32 v11, 7, v8
    v_lshlrev_b32 v10, 13, v10
    v_lshl_add_u32 v10, v9, 7, v10
    v_lshl_add_u32 v10, v11, 4, v10
    s_lshl_b32 s40, s32, 15
    s_lshl_b32 s41, s37, 9
    s_add_u32 s40, s40, s41
    s_add_u32 s40, s40, {WS_Q}
    s_mov_b32 s46, {f32bits(0.25*LOG2E):#x}
    """)
    stamp(a, 6)
    for r in range(16): a(f"v_mul_f32 v{ACC+r}, s46, v{ACC+r}")
    for r in range(8): a(f"v_cvt_pk_bf16_f32 v{ACC+16+r}, v{ACC+2*r}, v{ACC+2*r+1}")
    a(f"buffer_store_dwordx4 v[{ACC+16}:{ACC+19}], v10, s[20:23], s40 offen")
    a(f"buffer_store_dwordx4 v[{ACC+20}:{ACC+23}], v10, s[20:23], s40 offen offset:256")
    a("s_cmp_eq_u32 s3, 0\ns_cbranch_scc1 L_k1_kv")
    a("s_waitcnt vmcnt(2)")
    for m in range(4): a(f"v_lshl_or_b32 v{248+m}, v{241+2*m}, 16, v{240+2*m}")
    a(f"""
    s_lshr_b32 s44, s43, 3
    s_lshl_b32 s44, s44, 4
    s_add_u32 s44, s44, s42
    s_lshl_b32 s44, s44, 3
    s_and_b32 s45, s43, 7
    s_add_u32 s44, s44, s45
    s_lshl_b32 s44, s44, 10
    s_add_u32 s44, s44, {WS_WO}
    buffer_store_dwordx4 v[248:251], v7, s[20:23], s44 offen
    """)
    fin(a)
    a("L_k1_kv:")
    a("s_and_b32 s41, s33, 1\ns_lshl_b32 s42, s41, 4\nv_add_u32 v8, s42, v3")
    for sp in range(2):
        a(f"""
        v_add_u32 v10, {4*sp}, v4
        v_xor_b32 v11, v8, v10
        v_lshlrev_b32 v10, 9, v10
        v_lshl_add_u32 v{16+sp}, v11, 4, v10
        """)
    for S in range(16):
        a(f"ds_read_b128 v[{32+4*S}:{35+4*S}], v{16+S%2} offset:{(S//2)*4096}")
        if S == 7: a("s_waitcnt lgkmcnt(0)")
    a(f"""
    v_and_b32 v12, 1, v4
    v_lshrrev_b32 v13, 1, v4
    v_lshlrev_b32 v13, 3, v13
    s_lshl_b32 s40, s32, 11
    s_add_u32 s40, s40, {WS_KV}
    s_waitcnt vmcnt(2) lgkmcnt(0)
    s_cmp_ge_u32 s33, 2
    s_cbranch_scc1 L_k1_v
    """)
    for S in range(16):
        c = "0" if S == 0 else "v[20:23]"
        a(f"v_mfma_f32_16x16x32_bf16 v[20:23], a[{128+4*S}:{131+4*S}], v[{32+4*S}:{35+4*S}], {c}")
    a(f"""
    v_lshl_add_u32 v13, v12, 9, v13
    v_lshl_add_u32 v13, v8, 4, v13
    v_cvt_pk_bf16_f32 v24, v20, v21
    v_cvt_pk_bf16_f32 v25, v22, v23
    buffer_store_dwordx2 v[24:25], v13, s[20:23], s40 offen
    v_dot2_f32_bf16 v26, v24, v24, 0
    v_dot2_f32_bf16 v26, v25, v25, v26
    v_mov_b32 v27, v26
    v_permlane16_swap_b32 v26, v27
    v_add_f32 v26, v26, v27
    v_mov_b32 v27, v26
    v_permlane32_swap_b32 v26, v27
    v_add_f32 v26, v26, v27
    """)
    for sh in (1, 2, 4, 8): a(f"v_max_f32_dpp v26, v26, v26 row_ror:{sh} {DPPM}")
    a(f"""
    s_lshl_b32 s40, s32, 1
    s_add_u32 s40, s40, s41
    s_lshl_b32 s40, s40, 2
    s_add_u32 s40, s40, {WS_KN}
    v_mov_b32 v27, 0
    s_mov_b64 exec, 1
    buffer_store_dword v26, v27, s[20:23], s40 offen
    """)
    fin(a)
    a("L_k1_v:")
    for S in range(16):
        c = "0" if S == 0 else "v[20:23]"
        a(f"v_mfma_f32_16x16x32_bf16 v[20:23], v[{32+4*S}:{35+4*S}], a[{128+4*S}:{131+4*S}], {c}")
    a(f"""
    s_lshl_b32 s41, s41, 9
    s_add_u32 s40, s40, s41
    v_lshl_add_u32 v13, v12, 8, v13
    v_lshl_add_u32 v13, v3, 4, v13
    v_cvt_pk_bf16_f32 v24, v20, v21
    v_cvt_pk_bf16_f32 v25, v22, v23
    buffer_store_dwordx2 v[24:25], v13, s[20:23], s40 offen offset:1024
    """)
    kernel_end(a, name)
    return name, 256, 256, 32768, descriptor(name, 448, 256)

HEADER = open(f"cdna_kernels/{NAME}.s.ref").read().split("; Override launch")[0]

def build(kernels, path):
    a = Asm()
    a('.amdgcn_target "amdgcn-amd-amdhsa--gfx950"\n.text')
    infos = [k(a) for k in kernels]
    a("L_code_end:")
    log = []
    lines = hazard.pad(a.L, log)
    head = HEADER + "".join(f"; @launch kernel={n} grid=({g},1,1) block=({b},1,1) lds={l}\n" for n, g, b, l, d in infos)
    desc = '.section .rodata,"a"\n' + "".join(".p2align 6\n" + d for n, g, b, l, d in infos)
    open(path, "w").write(head + "\n".join(lines) + "\n" + desc)
    return log

if __name__ == "__main__":
    import gen2
    gen2.main()
```

```python
from gen import *

def mf32(d, a_, b, c): return f"v_mfma_f32_32x32x16_bf16 {d}, {a_}, {b}, {c}"
def mf16(d, a_, b, c): return f"v_mfma_f32_16x16x32_bf16 {d}, {a_}, {b}, {c}"
def V(b, n=1): return R('v', b, n)
HHST = os.environ.get('HHST', 'sc1')
TOUCH = int(os.environ.get('TOUCH', '0'))
K2PF = int(os.environ.get('K2PF', '1'))
K2ST = os.environ.get('K2ST', 'sc1')
ONESV = os.environ.get('ONESV', '0')

def sm32(d, a_, b): return f"v_smfmac_f32_32x32x32_bf16 {d}, {a_}, {b}, v1"
def sm16(d, a_, b): return f"v_smfmac_f32_16x16x64_bf16 {d}, {a_}, {b}, v1 abid:1"
K2_ONES = 131072
K2_OIMG = K2_ONES + 8192
K2_MOD  = K2_OIMG + 8192
K2_STAT = K2_MOD + 8192
K2_LDS  = K2_STAT + 256
def k2(a):
    name = "k2_attn_kernel"
    kernel_begin(a, name, 256)
    vq = VMQ(a)
    SA, SB, OA, OB, QA, QB, KF, V2 = 16, 32, 48, 64, 80, 84, 88, 96
    V1 = lambda t: 92
    XR = 104
    NREG = 100
    def wo_reg(i): return 112 + 4*i
    a(f"""
    s_load_dwordx2 s[8:9], s[0:1], {KA_WS}
    s_load_dwordx2 s[4:5], s[0:1], {KA_X}
    s_load_dwordx4 s[12:15], s[0:1], {KA_WG}
    s_load_dwordx2 s[16:17], s[0:1], {KA_WD}
    v_lshrrev_b32 v1, 6, v0
    v_and_b32 v2, 63, v0
    v_readfirstlane_b32 s3, v1
    s_and_b32 s32, s2, 7
    s_lshr_b32 s33, s2, 3
    s_lshl_b32 s32, s32, 5
    s_add_u32 s32, s32, s33
    v_lshlrev_b32 v7, 4, v2          ; lane*16
    v_bfe_u32 v3, v2, 3, 2
    v_lshrrev_b32 v1, 5, v2          ; h
    v_and_b32 v0, 7, v2              ; tok
    v_lshlrev_b32 v3, 8, v3
    v_lshl_add_u32 v3, v1, 7, v3
    v_lshl_add_u32 v3, v0, 4, v3
    v_lshlrev_b32 v4, 3, v2
    s_lshl_b32 s34, s32, 13
    s_lshl_b32 s35, s3, 11
    s_add_u32 s34, s34, s35
    s_add_u32 s34, s34, {WS_Q}
    s_lshl_b32 s73, s3, 12
    s_mov_b32 m0, s73
    s_mov_b32 s33, {WS_KN}
    s_waitcnt lgkmcnt(0)
    """)
    srd(a, 24, 8, 131072, WS_KV)
    dma = lambda off, tag: vq.issue(f"buffer_load_dwordx4 v7, s[24:27], m0 offen offset:{off} lds", tag)
    for i in range(4): dma(1024*i, "R0")
    srd(a, 20, 8, WS_END)
    vq.issue(f"buffer_load_dwordx4 {V(QA,4)}, v3, s[20:23], s34 offen", "q")
    vq.issue(f"buffer_load_dwordx4 {V(QB,4)}, v3, s[20:23], s34 offen offset:1024", "q")
    vq.issue(f"buffer_load_dwordx2 v[100:101], v4, s[20:23], s33 offen", "q")
    a(f"""
    v_and_b32 v5, 15, v2             ; n = l%16
    v_and_b32 v12, 11, v2
    v_cmp_eq_u32 vcc, 0, v12
    v_mov_b32 v13, 0
    v_mov_b32 v14, 0x3f803f80
    v_cndmask_b32 v12, v13, v14, vcc
    v_mov_b32 v13, v12
    v_mov_b32 v14, v12
    v_mov_b32 v15, v12
    s_add_u32 s33, s35, {K2_ONES}
    v_add_u32 v8, s33, v7
    ds_write_b128 v8, v[12:15]
    ds_write_b128 v8, v[12:15] offset:1024
    v_add_u32 v6, 0x10000, v7
    v_lshlrev_b32 v9, 4, v5
    v_lshl_add_u32 v9, v1, 8, v9
    v_add_u32 v9, 1024, v9
    v_and_b32 v10, 16, v2
    v_lshl_add_u32 v9, v10, 13, v9
    v_xor_b32 v10, 16, v10
    v_lshlrev_b32 v10, 9, v10        ; bump 8192 / 0
    s_add_u32 s33, s35, {K2_OIMG}
    v_add_u32 v11, s33, v3
    """)
    srd(a, 28, 4, 2048*512*2)
    if K2PF:
        a(f"""
        s_lshr_b32 s33, s2, 3
        s_lshl_b32 s33, s33, 2
        s_add_u32 s33, s33, s3
        s_and_b32 s34, s33, 1
        s_cmp_eq_u32 s34, 0
        s_cselect_b32 s36, s12, s14
        s_cselect_b32 s37, s13, s15
        s_mov_b32 s38, {512*3584}
        s_mov_b32 s39, 0x00020000
        s_lshr_b32 s34, s33, 1
        s_mul_i32 s48, s34, {8*3584}
        s_bfe_u32 s34, s2, 0x20001
        s_lshl_b32 s49, s34, 9
        s_mul_i32 s50, s34, 384
        s_add_u32 s50, s50, {2048-512}
        v_lshrrev_b32 v8, 3, v2
        v_mul_u32_u24 v8, 3584, v8
        v_and_b32 v102, 7, v2
        v_min_u32 v102, 6, v102
        v_lshl_add_u32 v8, v102, 7, v8
        v_cmp_gt_u32 vcc, 4, v102
        v_mov_b32 v102, s49
        v_mov_b32 v103, s50
        v_cndmask_b32 v102, v103, v102, vcc
        v_add_u32 v108, v102, v8
        s_mul_i32 s49, s33, {14*1024}
        s_bfe_u32 s34, s2, 0x10002
        s_lshl_b32 s34, s34, 9
        s_add_u32 s49, s49, s34
        v_lshrrev_b32 v8, 2, v2
        v_min_u32 v8, 13, v8
        v_and_b32 v102, 3, v2
        v_lshlrev_b32 v102, 7, v102
        v_lshl_add_u32 v109, v8, 10, v102
        """)
        srd(a, 40, 16, 1792*1024)
    a(f"""
    v_and_b32 v12, 1, v2
    v_bfe_u32 v8, v2, 1, 2
    v_lshl_add_u32 v12, v12, 2, v8   ; token of A row l%8
    v_and_b32 v8, 56, v2
    v_add_u32 v12, v12, v8
    v_lshlrev_b32 v12, 4, v12
    v_add_u32 v12, {K2_OIMG}, v12
    v_bfe_u32 v8, v2, 4, 1
    v_lshl_add_u32 v8, v8, 1, v1
    v_lshlrev_b32 v13, 10, v8
    v_lshl_add_u32 v13, v5, 4, v13   ; x offset
    s_lshl_b32 s65, s3, 9
    s_add_u32 s65, s65, {K2_MOD}
    v_lshlrev_b32 v14, 5, v5
    v_add_u32 v14, s65, v14
    v_lshlrev_b32 v15, 9, v5
    v_lshl_add_u32 v15, v8, 4, v15   ; H2 / X1 offset
    v_lshlrev_b32 v5, 6, v8
    v_add_u32 v5, {K2_STAT}, v5
    s_lshl_b32 s33, s3, 4
    v_add_u32 v4, s33, v5
    s_lshl_b32 s63, s3, 17
    s_add_u32 s63, s63, {WS_WO}
    s_lshl_b32 s64, s32, 13
    s_lshl_b32 s33, s3, 8
    s_add_u32 s64, s64, s33          ; x soffset
    s_add_u32 s62, s64, 4096
    s_lshr_b32 s66, s32, 2
    s_lshl_b32 s66, s66, 15
    s_lshl_b32 s33, s3, 13
    s_add_u32 s66, s66, s33
    s_and_b32 s33, s32, 3
    s_lshl_b32 s33, s33, 7
    s_add_u32 s66, s66, s33
    s_add_u32 s67, s66, {WS_X1}
    s_add_u32 s66, s66, {WS_H2}
    s_add_u32 s68, s35, {WS_MOD + 4096}
    s_add_u32 s69, s35, {K2_MOD}
    v_add_u32 v3, s73, v7
    v_add_u32 v0, 0x10000, v3
    v_and_b32 v8, 8, v2
    v_cmp_eq_u32 vcc, 0, v8
    v_mov_b32 v1, 0xeeeedddd
    v_mov_b32 v8, 0x4444dddd
    v_cndmask_b32 v1, v1, v8, vcc
    """)
    for r in range(32): a(f"v_mov_b32 v{OA+r}, 0")
    STP = [int(x) for x in os.environ.get("STP", "").split(",") if x]
    stamp(a, 1)
    vq.wait("q", "R0", extra=" lgkmcnt(0)")
    a("s_barrier")
    stamp(a, 2)
    def rdK(t): a(f"ds_read_b128 {V(KF,4)}, v{7 if t < 32 else 6} offset:{(t%32)*2048}")
    def rdV1(t): a(f"ds_read_b128 {V(V1(t),4)}, v9 offset:{(t%4)*2048}")
    def rdV2(t): a(f"ds_read_b128 {V(V2,4)}, v9 offset:{(t%4)*2048 + 512}")
    rdK(0); rdV1(0)
    a("v_max_f32 v100, v100, v101")
    a(f"v_dot2_f32_bf16 v102, v{QA}, v{QA}, 0\nv_dot2_f32_bf16 v103, v{QB}, v{QB}, 0")
    for sh in (1, 2, 4, 8):
        a(f"v_max_f32_dpp v100, v100, v100 row_ror:{sh} {DPPM}")
        if sh < 8:
            i = {1: 1, 2: 2, 4: 3}[sh]
            a(f"v_dot2_f32_bf16 v102, v{QA+i}, v{QA+i}, v102\nv_dot2_f32_bf16 v103, v{QB+i}, v{QB+i}, v103")
    a("s_waitcnt lgkmcnt(0)")
    a(mf32(V(SA,16), V(KF,4), V(QA,4), "0"))
    a(f"""
    v_mov_b32 v101, v100
    v_mov_b32 v8, v102
    v_mov_b32 v{SB}, v103
    v_permlane16_swap_b32 v100, v101
    v_permlane32_swap_b32 v102, v8
    v_permlane32_swap_b32 v103, v{SB}
    v_max_f32 v100, v100, v101
    v_add_f32 v102, v102, v8
    v_add_f32 v103, v103, v{SB}
    v_mov_b32 v101, v100
    v_max_f32 v102, v102, v103
    v_permlane32_swap_b32 v100, v101
    v_max_f32 v100, v100, v101
    v_mul_f32 v100, v100, v102
    v_cmp_nge_f32 vcc, {f32bits(2400.0):#x}, v100
    s_cbranch_vccnz L_k2_slow
    """)
    ev_kv = []
    for Rn in range(1, 8):
        for i in range(4):
            ev_kv.append((f"s_add_u32 m0, s73, {Rn*16384}" if i == 0 else None,
                          f"buffer_load_dwordx4 v7, s[24:27], m0 offen offset:{1024*i} lds", f"R{Rn}"))
    ev_misc = [("s_mov_b32 m0, s69", "buffer_load_dwordx4 v7, s[20:23], s68 offen lds", "mod"),
               (None, "buffer_load_dwordx4 v7, s[20:23], s68 offen offset:1024 lds", "mod")]
    ev_pf = []
    if K2PF:
        for q in range(4):
            msk = 0xffff << (16*(q % 2))
            ex = f"s_mov_b32 exec_lo, {msk if q < 2 else 0:#x}\ns_mov_b32 exec_hi, {msk if q >= 2 else 0:#x}\n"
            ev_pf.append((None, ex + "buffer_load_dword v111, v108, s[36:39], s48 offen\ns_mov_b64 exec, -1", "pf"))
            ev_pf.append((None, ex + "buffer_load_dword v111, v109, s[40:43], s49 offen\ns_mov_b64 exec, -1", "pf"))
    ev_wo = []
    for i in list(range(36, NREG)) + list(range(36)):
        ev_wo.append((f"s_add_u32 s70, s63, {(i//4)*4096}" if i % 4 == 0 else None,
                      f"buffer_load_dwordx4 {U(wo_reg(i),4)}, v7, s[20:23], s70 offen offset:{(i%4)*1024}", f"wo{i}"))
    ev_x = [(None, f"buffer_load_dwordx4 {V(XR+4*r,4)}, v13, s[28:31], s{64 if r == 0 else 62} offen", "x") for r in range(2)]
    ev_late = []
    for i in range(NREG, 128):
        j = (i - NREG)//4
        ev_late.append((f"s_add_u32 m0, s73, {j*16384}\ns_add_u32 s71, s63, {(i//4)*4096}" if i % 4 == 0 else None,
                        f"buffer_load_dwordx4 v7, s[20:23], s71 offen offset:{(i%4)*1024} lds", f"wo{i}"))
    BARS = {6: ("R1", "R2"), 22: ("R7",), 55: None}
    sched = {t: [] for t in range(64)}
    def place(lst, t, per):
        lst = list(lst)
        while lst:
            k = per - len(sched[t])
            sched[t] += lst[:k]; lst = lst[k:]
            if lst: t += 1
        return t
    for k, e in enumerate(ev_pf): sched[14 + 5*k].append(e)
    t = place(ev_kv, 0, 2)
    t = place(ev_misc + ev_wo, t + 1, 3)
    t = place(ev_late[:8] + ev_x, t, 3)
    assert 23 <= t <= 55, t
    t = place(ev_late[8:], 56, 3)
    assert t <= 63, t
    def ev(e):
        if e[0]: a(e[0])
        vq.issue(e[1], e[2])
    stream = []
    for t in range(64):
        for e in sched[t]:
            if e[0]: stream += [(t, "s", x, None) for x in e[0].split("\n")]
            stream.append((t, "e", e[1], e[2]))
    def sslot(t):
        if stream and stream[0][1] == "s" and stream[0][0] <= t + 1: a(stream.pop(0)[2])
    def eslot(t):
        if stream and stream[0][0] <= t:
            while stream[0][1] == "s": a(stream.pop(0)[2])
            x = stream.pop(0); vq.issue(x[2], x[3])
    def phase(t, isA):
        X, Y = (SA, SB) if isA else (SB, SA)
        OX, OY = (OA, OB) if isA else (OB, OA)
        QY = QB if isA else QA
        e = lambda i: a(f"v_exp_f32 v{X+i}, v{X+i}")
        first = isA and t == 0
        e(0); e(1)
        if not first: a(sm32(V(OY,16), V(V2,4), V(Y+8,8)))
        if isA:
            sslot(t); rdV2(t)
        else:
            if t in BARS:
                if BARS[t]: vq.wait(*BARS[t], extra=" lgkmcnt(0)")
                else: a("s_waitcnt lgkmcnt(0)")
                a("s_barrier")
            elif t < 63: a("s_waitcnt lgkmcnt(0)")
            if len(sched[t]) > 2: eslot(t)
        e(2); e(3); e(4)
        if isA or t < 63: a(mf32(V(Y,16), V(KF,4), V(QY,4), "0"))
        if isA:
            a("s_waitcnt lgkmcnt(1)")
            if t < 63: rdK(t+1)
        else:
            eslot(t)
        for i in range(5, 10): e(i)
        if not isA and t % 4 == 3 and t < 63: a("v_add_u32 v9, v10, v9")
        a(sm32(V(OX,16), V(V1(t),4), V(X,8)))
        if isA:
            a(f"s_waitcnt lgkmcnt({1 if t < 63 else 0})")
            eslot(t)
        elif t < 63:
            sslot(t); rdV1(t+1)
        for i in range(10, 16): e(i)
    a("L_k2_main:")
    for t in range(64):
        if STP:
            if t in STP: stamp(a, 1 + STP.index(t))
        elif t == 16: stamp(a, 3)
        phase(t, True); phase(t, False)
    assert not stream, stream
    if STP: stamp(a, 6)
    else: stamp(a, 4)
    ACC, AF = 16, 48
    a(f"v_rcp_f32 v101, v{OA+8}")
    a(f"v_mov_b32 v{ACC}, 0")
    a(sm32(V(OB,16), V(V2,4), V(SB+8,8)))
    for r in range(8): a(f"v_mul_f32 v{OA+r}, v101, v{OA+r}")
    a("L_k2_tail:")
    for r in range(4): a(f"v_cvt_pk_bf16_f32 v{OA+r}, v{OA+2*r}, v{OA+2*r+1}")
    a(f"ds_write_b128 v11, {V(OA,4)}")
    a(f"v_rcp_f32 v101, v{OB+8}")
    a(f"v_mov_b32 v{ACC}, 0")
    for r in range(8): a(f"v_mul_f32 v{OB+r}, v101, v{OB+r}")
    for r in range(4): a(f"v_cvt_pk_bf16_f32 v{OB+r}, v{OB+2*r}, v{OB+2*r+1}")
    a(f"ds_write_b128 v11, {V(OB,4)} offset:1024")
    for r in range(1, 16): a(f"v_mov_b32 v{ACC+r}, 0")
    vq.wait("wo35", "mod", extra=" lgkmcnt(0)")
    a("s_barrier")
    if not STP: stamp(a, 5)
    GA, SBm, CB = 80, 88, 96
    lq = []
    def lds(txt, tag): a(txt); lq.append(tag)
    def lwait(tag):
        n = len(lq) - 1 - max(i for i, x in enumerate(lq) if x == tag)
        return f"lgkmcnt({min(n, 15)})"
    for S in range(8): lds(f"ds_read_b128 {V(AF+4*S,4)}, v12 offset:{1024*S}", f"A{S}")
    for r in range(16, 32): a(f"v_mov_b32 v{ACC+r}, 0")
    todo = []
    for k in range(128 - NREG):
        ad = (k//4)*16384 + (k % 4)*1024
        todo.append((f"ds_read_b128 {U(wo_reg(k),4)}, v{3 if ad < 65536 else 0} offset:{ad % 65536}", f"wo{NREG+k}"))
    for k in range(6):
        todo.append((f"ds_read_b128 {V(GA+4*k,4)}, v14 offset:{2048*(k//2) + 16*(k%2)}", "m"))
    for n in range(64):
        S, nt = divmod(n, 8)
        w = []
        if n == 0: w.append(lwait("A0"))
        elif n == 1: w.append(lwait("A7")); w.append(f"vmcnt({vq.count(('wo107', 'x'))})")
        elif n == 10: w.append("vmcnt(0)")
        elif n == NREG//2: w.append("lgkmcnt(0)")
        if w: a("s_waitcnt " + " ".join(w))
        src = wo_reg(2*n) if 2*n < NREG else wo_reg(2*n - NREG)
        a(sm16(V(ACC+4*nt,4), V(AF+4*S,4), U(src,8)))
        if n >= 2 and todo: lds(*todo.pop(0))
    assert not todo
    if not STP: stamp(a, 6)
    T = 48
    Z = 64
    P = 104
    for p in range(8):
        a(f"v_lshlrev_b32 v{T+2*p}, 16, v{XR+p}\nv_and_b32 v{T+2*p+1}, 0xffff0000, v{XR+p}")
    for nt in range(8):
        for r in range(2): a(f"v_permlane32_swap_b32 v{ACC+4*nt+r}, v{ACC+4*nt+r+2}")
    for r in range(2):
        for nt in range(8): a(f"v_add_f32 v{Z+8*r+nt}, v{ACC+4*nt+r}, v{ACC+4*nt+r+2}")
    for p in range(8):
        a(f"v_pk_fma_f32 {V(T+2*p,2)}, {V(Z+2*p,2)}, {V(GA+2*(p%4),2)}, {V(T+2*p,2)}")
    for p in range(8): a(f"v_cvt_pk_bf16_f32 v{P+p}, v{T+2*p}, v{T+2*p+1}")
    a("s_mov_b32 s33, 0x3f803f80")
    ST = 16
    for p in range(4):
        for r in range(2):
            a(f"v_dot2_f32_bf16 v{ST+2*r}, v{P+4*r+p}, s33, {'0' if p == 0 else f'v{ST+2*r}'}")
            a(f"v_dot2_f32_bf16 v{ST+2*r+1}, v{P+4*r+p}, v{P+4*r+p}, {'0' if p == 0 else f'v{ST+2*r+1}'}")
    for r in range(2):
        vq.issue(f"buffer_store_dwordx4 {V(P+4*r,4)}, v15, s[20:23], s67 offen offset:{64*r} {K2ST}", "x1")
    for sh in (1, 2, 4, 8):
        for k in range(4): a(f"v_add_f32_dpp v{ST+k}, v{ST+k}, v{ST+k} row_ror:{sh} {DPPM}")
    a(f"ds_write_b128 v4, {V(ST,4)}")
    for p in range(8):
        a(f"v_lshlrev_b32 v{T+2*p}, 16, v{P+p}\nv_and_b32 v{T+2*p+1}, 0xffff0000, v{P+p}")
    a("s_waitcnt lgkmcnt(0)\ns_barrier")
    for k in range(4): a(f"ds_read_b128 {V(20+4*k,4)}, v5 offset:{16*k}")
    a(f"""
    s_mov_b32 s33, {f32bits(1.0/512):#x}
    s_mov_b32 s34, {f32bits(1e-5):#x}
    s_waitcnt lgkmcnt(2)
    v_pk_add_f32 v[20:21], v[20:21], v[24:25]
    v_pk_add_f32 v[22:23], v[22:23], v[26:27]
    s_waitcnt lgkmcnt(0)
    v_pk_add_f32 v[28:29], v[28:29], v[32:33]
    v_pk_add_f32 v[30:31], v[30:31], v[34:35]
    v_pk_add_f32 v[20:21], v[20:21], v[28:29]
    v_pk_add_f32 v[22:23], v[22:23], v[30:31]
    v_mul_f32 v20, s33, v20
    v_mul_f32 v22, s33, v22
    v_mul_f32 v21, s33, v21
    v_mul_f32 v23, s33, v23
    v_fma_f32 v21, -v20, v20, v21
    v_fma_f32 v23, -v22, v22, v23
    v_max_f32 v21, 0, v21
    v_max_f32 v23, 0, v23
    v_add_f32 v21, s34, v21
    v_add_f32 v23, s34, v23
    v_rsq_f32 v24, v21
    v_rsq_f32 v28, v23
    v_mul_f32 v26, -v20, v24
    v_mul_f32 v30, -v22, v28
    """)
    for r in range(2):
        for p in range(4*r, 4*r+4):
            a(f"v_pk_fma_f32 {V(T+2*p,2)}, {V(T+2*p,2)}, {V(24+4*r,2)}, {V(26+4*r,2)} op_sel_hi:[1,0,0]")
        for p in range(4*r, 4*r+4):
            a(f"v_pk_fma_f32 {V(T+2*p,2)}, {V(T+2*p,2)}, {V(CB+2*(p%4),2)}, {V(SBm+2*(p%4),2)}")
        for p in range(4*r, 4*r+4): a(f"v_cvt_pk_bf16_f32 v{Z+p}, v{T+2*p}, v{T+2*p+1}")
        a(f"buffer_store_dwordx4 {V(Z+4*r,4)}, v15, s[20:23], s66 offen offset:{64*r} {K2ST}")
    fin(a)
    CA_, CB_ = 112, 128
    W1 = V1(0)
    a("L_k2_slow:\ns_waitcnt vmcnt(0) lgkmcnt(0)")
    vq_save = vq.q; vq.q = []
    for e in ev_kv + ev_misc: ev(e)
    a("s_waitcnt vmcnt(0)\ns_barrier\ns_barrier")
    a("v_mov_b32 v100, 0xff800000\nv_mov_b32 v101, 0xff800000\ns_mov_b32 s33, 0")
    a("L_k2_slow1:")
    a(f"buffer_load_dwordx4 {V(KF,4)}, v7, s[24:27], s33 offen\ns_waitcnt vmcnt(0)")
    a(mf32(V(SA,16), V(KF,4), V(QA,4), "0")); a(mf32(V(SB,16), V(KF,4), V(QB,4), "0"))
    for r in range(8): a(f"v_max3_f32 v100, v{SA+2*r}, v{SA+2*r+1}, v100")
    for r in range(8): a(f"v_max3_f32 v101, v{SB+2*r}, v{SB+2*r+1}, v101")
    a("""
    s_add_u32 s33, s33, 2048
    s_cmp_lt_u32 s33, 131072
    s_cbranch_scc1 L_k2_slow1
    v_mov_b32 v102, v100
    v_mov_b32 v103, v101
    v_permlane32_swap_b32 v100, v102
    v_permlane32_swap_b32 v101, v103
    v_max_f32 v100, v100, v102
    v_max_f32 v101, v101, v103
    """)
    for r in range(16):
        a(f"v_sub_f32 v{CA_+r}, 0, v100\nv_sub_f32 v{CB_+r}, 0, v101")
    for r in range(8): a(f"v_mov_b32 v{W1+r}, 0x3f803f80")
    a("""
    s_mov_b32 s33, 0
    s_mov_b32 s34, 0x0000ffff
    s_mov_b32 s35, 0x0000ffff
    L_k2_slow2:
    """)
    a(f"""
    buffer_load_dwordx4 {V(KF,4)}, v7, s[24:27], s33 offen
    s_mov_b64 exec, s[34:35]
    buffer_load_dwordx4 {V(W1,4)}, v9, s[24:27], s33 offen
    buffer_load_dwordx4 {V(V2,4)}, v9, s[24:27], s33 offen offset:512
    s_mov_b64 exec, -1
    s_waitcnt vmcnt(0)
    """)
    a(mf32(V(SA,16), V(KF,4), V(QA,4), V(CA_,16))); a(mf32(V(SB,16), V(KF,4), V(QB,4), V(CB_,16)))
    for X, O in ((SA, OA), (SB, OB)):
        for r in range(16): a(f"v_exp_f32 v{X+r}, v{X+r}")
        a(sm32(V(O,16), V(W1,4), V(X,8))); a(sm32(V(O,16), V(V2,4), V(X+8,8)))
    a("""
    s_nop 7
    s_nop 7
    s_add_u32 s33, s33, 2048
    s_cmp_lt_u32 s33, 131072
    s_cbranch_scc1 L_k2_slow2
    s_barrier
    """)
    for k, e in enumerate(ev_wo + ev_late + ev_x):
        ev(e)
        if k % 32 == 31: a("s_waitcnt vmcnt(0)")
    a("s_waitcnt vmcnt(0)")
    vq.q = vq_save
    a(f"v_rcp_f32 v101, v{OA+8}")
    for r in range(8): a(f"v_mul_f32 v{OA+r}, v101, v{OA+r}")
    a("s_branch L_k2_tail")
    kernel_end(a, name, fall=False)
    return name, 256, 256, K2_LDS, descriptor(name, 512, 256)

def addrB(cb): return 131072 + cb*6400 if cb < 5 else (cb-5)*6400
def k3(a):
    name = "k3_glu_kernel"
    kernel_begin(a, name, 256)
    vq = VMQ(a)
    ACC, AR, NA, TMP = 32, 144, 8, 176
    VA, VB, SA_, SBv = 8, 16, 20, 22
    a(f"""
    s_load_dwordx2 s[8:9], s[0:1], {KA_WS}
    s_load_dwordx4 s[12:15], s[0:1], {KA_WG}
    v_lshrrev_b32 v1, 6, v0
    v_and_b32 v2, 63, v0
    v_readfirstlane_b32 s3, v1
    s_and_b32 s32, s2, 1
    s_lshl_b32 s32, s32, 3
    s_bfe_u32 s33, s2, 0x30003
    s_add_u32 s32, s32, s33          ; rb
    s_bfe_u32 s33, s2, 0x20001
    s_lshl_b32 s33, s33, 2
    s_lshr_b32 s34, s2, 6
    s_add_u32 s33, s33, s34          ; fb
    v_lshlrev_b32 v7, 4, v2
    v_lshrrev_b32 v3, 3, v2
    v_bfe_u32 v4, v2, 4, 1           ; (row>>1)&1
    v_bfe_u32 v5, v2, 1, 2           ; pair
    v_xor_b32 v5, v5, v4
    v_and_b32 v6, 1, v2
    v_mul_u32_u24 v3, 3584, v3
    v_lshl_add_u32 v3, v6, 4, v3
    v_lshl_add_u32 v{SA_}, v5, 5, v3
    v_xor_b32 v5, 2, v5
    v_lshl_add_u32 v{SA_+1}, v5, 5, v3
    s_lshl_b32 s35, s32, 2
    s_add_u32 s35, s35, s3
    s_lshl_b32 s36, s35, 15
    s_add_u32 s36, s36, {WS_H2}      ; h2 fragments
    s_mul_i32 s44, s3, {16*3584}
    s_lshl_b32 s45, s33, 7
    s_add_u32 s44, s44, s45
    s_lshl_b32 s40, s3, 12           ; w*4096
    s_waitcnt lgkmcnt(0)
    """)
    srd(a, 20, 8, WS_END)
    if TOUCH:
        a(f"""
        s_lshr_b32 s46, s2, 3
        s_lshl_b32 s46, s46, 2
        s_add_u32 s46, s46, s3
        s_lshl_b32 s46, s46, 13
        s_and_b32 s47, s2, 1
        s_lshl_b32 s47, s47, 20
        s_add_u32 s46, s46, s47
        s_add_u32 s46, s46, {WS_H2}
        v_lshlrev_b32 v28, 7, v2
        """)
        vq.issue("buffer_load_dword v29, v28, s[20:23], s46 offen", "pf")
    srd(a, 24, 12, 512*3584)
    srd(a, 28, 14, 512*3584)
    def slotA(c):
        L = []
        L.append(lambda: a(f"s_add_u32 s46, s44, {c*64*3584}\ns_add_u32 s47, s44, {c*64*3584 + 8*3584}"))
        for m in range(2):
            for hf in range(2):
                L.append(lambda m=m, hf=hf: (a(f"s_add_u32 m0, s40, {c*16384 + m*2048 + hf*1024}"),
                         vq.issue(f"buffer_load_dwordx4 v{SA_+m}, s[{24+4*m}:{27+4*m}], s{46+hf} offen lds", f"c{c}")))
        L.append(lambda: a(f"s_add_u32 s43, s36, {c*4096}"))
        for i in range(4):
            L.append(lambda i=i: vq.issue(f"buffer_load_dwordx4 {R('a', 16*c+4*i, 4)}, v7, s[20:23], s43 offen offset:{1024*i}", f"c{c}"))
        return L
    def slotB(j):
        L = []
        for m in range(2):
            for i in range(3):
                pre = f"s_add_u32 s46, s48, {j*128*3584}\n" if (m, i) == (0, 0) else ""
                L.append(lambda m=m, i=i, pre=pre: (a(pre + f"s_add_u32 m0, s{52+j}, {m*3200 + i*1024}"),
                         vq.issue(f"buffer_load_dwordx4 v{SBv+i}, s[{24+4*m}:{27+4*m}], s46 offen lds", f"b{j}")))
        return L
    for c in range(3):
        for f in slotA(c): f()
    a(f"""
    v_bfe_u32 v3, v2, 4, 1           ; m
    v_lshrrev_b32 v4, 5, v2          ; h
    v_bfe_u32 v5, v2, 2, 2           ; r
    v_and_b32 v6, 3, v2              ; c
    v_lshl_add_u32 v4, v4, 3, v5     ; 8h + r
    v_lshlrev_b32 v25, 3, v6
    v_lshl_add_u32 v26, v4, 7, v25
    v_lshl_add_u32 v26, v3, 11, v26
    v_lshrrev_b32 v5, 1, v5
    v_lshl_add_u32 v5, v3, 1, v5     ; (r>>1) ^ 2m
    v_mad_u32_u24 v27, v4, 48, 0
    v_lshl_add_u32 v27, v27, 1, v25
    v_mul_u32_u24 v3, 3200, v3
    v_add_u32 v{VB}, v27, v3
    v_add_u32 v{VB+1}, 0x10000, v{VB}
    v_add_u32 v{VB+2}, 0x20000, v{VB}
    """)
    for t in range(4):
        a(f"v_xor_b32 v6, {t}, v5\nv_lshl_add_u32 v{VA+t}, v6, 5, v26\nv_add_u32 v{VA+4+t}, 0x10000, v{VA+t}")
    for i in range(3):
        a(f"""
        v_add_u32 v3, {64*i}, v2
        v_mul_u32_u24 v4, 171, v3
        v_lshrrev_b32 v4, 10, v4
        v_mul_u32_u24 v5, 6, v4
        v_sub_u32 v5, v3, v5
        v_mul_u32_u24 v4, 3584, v4
        v_lshl_add_u32 v{SBv+i}, v5, 4, v4
        """)
    a(f"""
    s_mul_i32 s48, s3, {32*3584}
    s_mul_i32 s49, s33, 96
    s_add_u32 s48, s48, s49
    s_add_u32 s48, s48, 2048
    s_mul_i32 s49, s3, 6400
    s_add_u32 s52, s49, 131072
    s_add_u32 s53, s49, {4*6400 - 32000}
    s_cmp_eq_u32 s3, 0
    s_cselect_b32 s53, {addrB(4)}, s53
    s_add_u32 s54, s49, {8*6400 - 32000}
    s_add_u32 s55, s49, {12*6400 - 32000}
    s_mul_i32 s37, s35, 112
    s_lshl_b32 s38, s33, 2
    s_add_u32 s38, s37, s38
    s_mul_i32 s39, s33, 3
    s_add_u32 s39, s39, s37
    s_lshl_b32 s37, s38, 10
    s_add_u32 s37, s37, {WS_HH}
    s_lshl_b32 s38, s39, 10
    s_add_u32 s38, s38, {WS_HH + 65536}
    s_mov_b32 s42, {f32bits(-LOG2E):#x}
    """)
    seq = [(t, s) for s in range(32) for t in range(4)]
    for t in range(4, 7): seq += [(t, s) for s in range(32)]
    def rdA(n):
        t, s = seq[n]
        for q in range(2):
            if t < 4:
                ad = s*4096 + q*512; reg = VA + t + 4*(ad//65536)
            else:
                ad = addrB(s//2) + (s % 2)*1536 + q*384 + (t-4)*32; reg = VB + ad//65536
            a(f"ds_read_b64_tr_b16 {V(AR+4*(n%NA)+2*q,2)}, v{reg} offset:{ad%65536}")
    def epi(g):
        A = ACC + 16*g
        T = TMP + 16*(g % 2)
        ops = []
        for r in range(8): ops.append((4, f"v_mul_f32 v{T+r}, s42, v{A+r}"))
        for r in range(8): ops.append((8, f"v_exp_f32 v{T+r}, v{T+r}"))
        for r in range(8): ops.append((4, f"v_add_f32 v{T+r}, 1.0, v{T+r}"))
        for r in range(8): ops.append((8, f"v_rcp_f32 v{T+r}, v{T+r}"))
        for r in range(8): ops.append((4, f"v_mul_f32 v{T+r}, v{T+r}, v{A+8+r}"))
        for r in range(4): ops.append((4, f"v_cvt_pk_bf16_f32 v{T+8+r}, v{T+2*r}, v{T+2*r+1}"))
        ops.append((4, f"buffer_store_dwordx4 {V(T+8,4)}, v7, s[20:23], s{37 + g//4} offen offset:{1024*(g%4)} {HHST}"))
        return ops
    stamp(a, 1)
    vq.wait("c0"); a("s_barrier")
    stamp(a, 2)
    LA = 6
    for n in range(LA): rdA(n)
    pend = []
    eq = []
    N = len(seq)
    allB = slotB(0) + slotB(1) + slotB(2) + slotB(3)
    for n in range(N):
        t, s = seq[n]
        if n == 128: stamp(a, 3)
        if n < 80 and n % 16 == 0: pend = slotA(n//16 + 3)
        if n in (80, 96, 112): pend = allB[:8]; allB = allB[8:]
        if n == 128 + 3:
            for g in range(4): eq += epi(g)
        if n == 160 + 3: eq += epi(4)
        if n == 192 + 3: eq += epi(5)
        a(f"s_waitcnt lgkmcnt({2*min(LA-1, N-1-n)})")
        a(mf32(V(ACC+16*t,16), V(AR+4*(n%NA),4), R('a', 4*s, 4), "0" if s == 0 else V(ACC+16*t,16)))
        nx = n + LA
        if nx < 128 and nx % 16 == 0:
            vq.wait(f"c{nx//16}"); a("s_barrier")
        if nx == 128: vq.wait("b0", "b1"); a("s_barrier")
        if nx == 144: vq.wait("b2", "b3"); a("s_barrier")
        if nx < N: rdA(nx)
        if pend and n % 16 < 10: pend.pop(0)()
        bud = 16
        while eq and eq[0][0] <= bud:
            cst, txt = eq.pop(0); bud -= cst
            if txt.startswith("buffer"): vq.issue(txt, "st")
            else: a(txt)
    assert not pend, len(pend)
    stamp(a, 4)
    for cst, txt in eq + epi(6): a(txt)
    kernel_end(a, name)
    return name, 256, 256, 163840, descriptor(name, 384, 256)

def k4(a):
    name = "k4_down_kernel"
    kernel_begin(a, name, 256)
    vq = VMQ(a)
    ACC = 16
    X1, GB = 80, 88
    AF = 104
    DEP, RING = 15, 20
    a(f"""
    s_load_dwordx2 s[8:9], s[0:1], {KA_WS}
    s_load_dwordx2 s[4:5], s[0:1], {KA_OUT}
    s_load_dwordx2 s[6:7], s[0:1], {KA_WD}
    v_lshrrev_b32 v1, 6, v0
    v_and_b32 v2, 63, v0
    v_readfirstlane_b32 s3, v1
    s_and_b32 s32, s2, 3
    s_lshl_b32 s32, s32, 3
    s_bfe_u32 s33, s2, 0x30003
    s_add_u32 s32, s32, s33          ; tb
    s_bfe_u32 s33, s2, 0x10002
    s_lshl_b32 s33, s33, 2
    s_lshr_b32 s34, s2, 6
    s_add_u32 s33, s33, s34          ; nb
    v_lshlrev_b32 v7, 4, v2
    v_lshrrev_b32 v3, 3, v2
    v_bfe_u32 v4, v2, 4, 1
    v_and_b32 v5, 7, v2
    v_lshlrev_b32 v4, 2, v4
    v_xor_b32 v5, v5, v4
    v_lshlrev_b32 v3, 10, v3
    v_lshl_add_u32 v8, v5, 4, v3
    v_add_u32 v9, 8192, v8           ; rows 8..15
    s_mul_i32 s35, s3, 28            ; first G
    s_lshl_b32 s36, s35, 14
    s_lshl_b32 s37, s33, 7
    s_add_u32 s36, s36, s37
    s_mul_i32 s37, s32, 224
    s_add_u32 s37, s37, s35
    s_lshl_b32 s37, s37, 10
    s_add_u32 s37, s37, {WS_HH}
    s_add_u32 s38, s37, {112*1024}
    s_mul_i32 s39, s3, 40960
    s_waitcnt lgkmcnt(0)
    """)
    srd(a, 20, 8, WS_END)
    if TOUCH:
        a(f"""
        s_lshr_b32 s46, s2, 3
        s_lshl_b32 s46, s46, 2
        s_add_u32 s46, s46, s3
        s_mul_i32 s46, s46, {112*128}
        s_and_b32 s47, s2, 3
        s_mul_i32 s47, s47, {16*112*1024}
        s_add_u32 s46, s46, s47
        s_add_u32 s46, s46, {WS_HH}
        s_add_u32 s47, s46, {56*128}
        v_min_u32 v13, 55, v2
        v_lshlrev_b32 v13, 7, v13
        """)
        vq.issue("buffer_load_dword v14, v13, s[20:23], s46 offen", "pf")
        vq.issue("buffer_load_dword v14, v13, s[20:23], s47 offen", "pf")
    srd(a, 28, 6, 1792*1024)
    def F(g, k): return 256 + 8*(g % (DEP+1)) + 4*k
    def loads(g):
        L = []
        for hf in range(2):
            pre = "s_add_u32 s36, s36, 16384\n" if (hf == 0 and g) else ""
            L.append(lambda hf=hf, pre=pre: (a(pre + f"s_add_u32 m0, s39, {(g%RING)*2048 + hf*1024}"),
                     vq.issue(f"buffer_load_dwordx4 v{8+hf}, s[28:31], s36 offen lds", f"g{g}")))
        for tk in range(2):
            pre = f"s_add_u32 s{37+tk}, s{37+tk}, 4096\n" if (g % 4 == 0 and g) else ""
            L.append(lambda tk=tk, pre=pre: (a(pre), vq.issue(f"buffer_load_dwordx4 {U(F(g,tk),4)}, v7, s[20:23], s{37+tk} offen offset:{(g%4)*1024}", f"g{g}")))
        return L
    for g in range(DEP):
        for f in loads(g): f()
    srd(a, 24, 4, 2048*512*2)
    a(f"""
    s_lshr_b32 s40, s3, 1            ; tk
    s_and_b32 s41, s3, 1             ; e
    s_lshl_b32 s42, s32, 1
    s_add_u32 s42, s42, s40
    s_lshl_b32 s43, s33, 2
    s_lshl_b32 s44, s41, 1
    s_add_u32 s43, s43, s44
    s_lshl_b32 s44, s42, 15
    s_lshl_b32 s45, s43, 10
    s_add_u32 s45, s45, s44
    s_add_u32 s45, s45, {WS_X1}
    s_lshl_b32 s46, s43, 6
    s_add_u32 s46, s46, {WS_MOD + 5*2048}
    s_lshl_b32 s47, s43, 5
    s_add_u32 s47, s47, s44
    v_lshrrev_b32 v1, 5, v2          ; h
    v_bfe_u32 v3, v2, 2, 2           ; r
    v_lshl_add_u32 v4, v1, 2, v3
    v_lshlrev_b32 v4, 7, v4          ; (4h + r)*128
    v_bfe_u32 v5, v2, 4, 1
    v_lshl_add_u32 v4, v5, 5, v4
    v_and_b32 v5, 1, v2
    v_lshl_add_u32 v4, v5, 4, v4
    v_bfe_u32 v5, v2, 1, 1
    v_lshl_add_u32 v4, v5, 3, v4
    v_add_u32 v4, s39, v4
    v_lshrrev_b32 v3, 1, v3
    v_lshl_add_u32 v10, v3, 6, v4    ; e = 0
    v_xor_b32 v3, 1, v3
    v_lshl_add_u32 v11, v3, 6, v4    ; e = 1
    v_lshlrev_b32 v3, 5, v1
    v_and_b32 v4, 31, v2
    v_lshlrev_b32 v4, 10, v4
    v_lshl_add_u32 v4, v1, 4, v4
    v_add_u32 v5, s39, v7
    s_lshl_b32 s48, s3, 12
    v_add_u32 v6, s48, v7
    v_add_u32 v12, {2*40960}, v6
    """)
    def tr(g):
        for e in range(2):
            for q in range(2):
                a(f"ds_read_b64_tr_b16 {V(AF+8*(g%2)+4*e+2*q,2)}, v{10+e} offset:{(g%RING)*2048 + q*1024}")
    stamp(a, 1)
    vq.wait("g0")
    stamp(a, 2)
    tr(0)
    for g in range(28):
        if g < 27:
            vq.wait(f"g{g+1}"); tr(g+1)
        a(f"s_waitcnt lgkmcnt({4 if g < 27 else 0})")
        pend = loads(g + DEP) if g + DEP < 28 else []
        for tk in range(2):
            for e in range(2):
                acc = V(ACC + 32*tk + 16*e, 16)
                a(mf32(acc, V(AF+8*(g%2)+4*e,4), U(F(g,tk),4), "0" if g == 0 else acc))
                if pend: pend.pop(0)()
        if g == 28 - DEP:
            for qd in range(2):
                vq.issue(f"buffer_load_dwordx4 {V(X1+4*qd,4)}, v7, s[20:23], s45 offen offset:{1024*qd}", "e")
                for hf in range(2):
                    vq.issue(f"buffer_load_dwordx4 {V(GB+8*qd+4*hf,4)}, v3, s[20:23], s46 offen offset:{64*qd+16*hf}", "e")
    stamp(a, 3)
    for o in range(4):
        for k in range(4):
            a(f"ds_write_b128 v5, {V(ACC+16*o+4*k,4)} offset:{o*4096 + k*1024}")
    a("s_waitcnt lgkmcnt(0)\ns_barrier")
    RD = 128
    for src in range(4):
        for k in range(4):
            a(f"ds_read_b128 {V(RD+16*src+4*k,4)}, v{6 if src < 2 else 12} offset:{(src%2)*40960 + k*1024}")
    T = 16
    vq.wait("e")
    for p in range(8):
        a(f"v_lshlrev_b32 v{T+2*p}, 16, v{X1+p}\nv_and_b32 v{T+2*p+1}, 0xffff0000, v{X1+p}")
    a("s_waitcnt lgkmcnt(8)")
    for k in range(8): a(f"v_pk_add_f32 {V(RD+2*k,2)}, {V(RD+2*k,2)}, {V(RD+16+2*k,2)}")
    a("s_waitcnt lgkmcnt(0)")
    for k in range(8): a(f"v_pk_add_f32 {V(RD+32+2*k,2)}, {V(RD+32+2*k,2)}, {V(RD+48+2*k,2)}")
    for k in range(8): a(f"v_pk_add_f32 {V(RD+2*k,2)}, {V(RD+2*k,2)}, {V(RD+32+2*k,2)}")
    for k in range(8): a(f"v_pk_fma_f32 {V(T+2*k,2)}, {V(GB+2*k,2)}, {V(RD+2*k,2)}, {V(T+2*k,2)}")
    for p in range(8): a(f"v_cvt_pk_bf16_f32 v{T+16+p}, v{T+2*p}, v{T+2*p+1}")
    for qd in range(2):
        a(f"buffer_store_dwordx4 {V(T+16+4*qd,4)}, v4, s[24:27], s47 offen offset:{32*qd}")
    kernel_end(a, name)
    return name, 256, 256, 163840, descriptor(name, 384, 256)

def main():
    log = build([k0, k1, k2, k3, k4], os.environ.get("OUT", "dbg.s") if DBG else f"cdna_kernels/{NAME}.s")
    for l in log: print(l)
```

```python
import re
REG = re.compile(r'^(-|\|)?(?:abs\()?([vas])(?:(\d+)|\[(\d+):(\d+)\])\)?\|?$')
TRANS = ('v_exp_', 'v_log_', 'v_rcp_', 'v_rsq_', 'v_sqrt_', 'v_sin_', 'v_cos_')

def regs(op):
    op = op.strip()
    if op == 'vcc': return {('s', 106), ('s', 107)}
    if op == 'vcc_lo': return {('s', 106)}
    if op == 'vcc_hi': return {('s', 107)}
    if op == 'exec': return {('s', 126), ('s', 127)}
    if op == 'm0': return {('s', 124)}
    m = REG.match(op)
    if not m: return set()
    p = m.group(2)
    if m.group(3) is not None: lo = hi = int(m.group(3))
    else: lo, hi = int(m.group(4)), int(m.group(5))
    return {(p, i) for i in range(lo, hi + 1)}

class I:
    def __init__(self, line):
        self.line = line
        t = line.split(';')[0].strip()
        parts = t.split(None, 1)
        self.mn = parts[0]
        rest = parts[1] if len(parts) > 1 else ''
        ops, depth, cur = [], 0, ''
        for ch in rest:
            if ch == '[': depth += 1
            if ch == ']': depth -= 1
            if ch == ',' and depth == 0: ops.append(cur.strip()); cur = ''
            else: cur += ch
        if cur.strip(): ops.append(cur.strip())
        mods = ''
        if ops:
            sp = ops[-1].split(None, 1)
            ops[-1] = sp[0]
            mods = sp[1] if len(sp) > 1 else ''
        self.ops, self.mods = ops, mods
        mn = self.mn
        self.kind = 'other'
        self.w, self.r = set(), set()
        self.ws = 1
        self.mfma = None
        R = [regs(o) for o in ops]
        allr = lambda k: set().union(*R[k:]) if len(R) > k else set()
        if mn == 's_nop':
            self.ws = int(ops[0], 0) + 1
        elif mn.startswith('v_mfma'):
            self.kind = 'mfma'
            self.passes = 8 if '32x32x16' in mn else 4 if '16x16x32' in mn else None
            assert self.passes, mn
            self.D, self.A, self.B, self.C = R[0], R[1], R[2], R[3]
            self.w = self.D; self.r = self.A | self.B | self.C
        elif mn.startswith('v_smfmac'):
            self.kind = 'mfma'
            self.passes = 8 if '32x32x32' in mn else 4 if '16x16x64' in mn else None
            assert self.passes, mn
            self.D, self.A, self.B, self.C = R[0], R[1], R[2] | R[3], R[0]
            self.w = self.D; self.r = self.A | self.B | self.C
        elif mn.startswith('v_'):
            self.kind = 'valu'
            self.trans = mn.startswith(TRANS)
            self.dpp = ('_dpp' in mn) or ('row_' in mods) or ('quad_perm' in mods)
            self.perml = mn.startswith('v_permlane')
            self.rdlane = mn.startswith(('v_readfirstlane', 'v_readlane'))
            self.dot = mn.startswith('v_dot')
            if self.perml:
                self.w = R[0] | R[1]; self.r = R[0] | R[1]
            elif mn.startswith(('v_add_co', 'v_sub_co', 'v_addc_co', 'v_subb_co', 'v_subrev_co')):
                self.w = R[0] | R[1]; self.r = allr(2)
            else:
                self.w = R[0]; self.r = allr(1)
                if mn.startswith(('v_fmac', 'v_dot2c', 'v_pk_fmac')) or self.dpp or 'UNUSED_PRESERVE' in mods: self.r |= R[0]
            if self.dot:
                self.dotC = R[0] if mn.startswith('v_dot2c') else R[3]
                self.dotAB = (R[1] | R[2])
        elif mn.startswith('ds_'):
            self.kind = 'ds'
            if mn.startswith(('ds_read', 'ds_bpermute', 'ds_permute', 'ds_swizzle')):
                self.w = R[0]; self.r = allr(1)
            else:
                self.r = allr(0)
        elif mn.startswith(('buffer_', 'global_')):
            self.kind = 'vmem'
            self.lds = (' lds' in ' ' + mods) or ('_lds_' in mn)
            self.store = ('store' in mn) or ('atomic' in mn)
            self.sdata = set()
            if mn in ('buffer_wbl2', 'buffer_inv'):
                pass
            elif self.lds:
                self.r = allr(0) | {('s', 124)}
            elif 'load' in mn:
                self.w = R[0]; self.r = allr(1)
            else:
                self.r = allr(0)
                d = R[0] if mn.startswith('buffer_') else R[1]
                if len(d) >= 3: self.sdata = d
                if 'atomic' in mn and 'sc0' in mods: self.w = R[0]
        elif mn.startswith('s_'):
            self.kind = 'salu'
            if mn.startswith(('s_cmp', 's_cbranch', 's_branch', 's_waitcnt', 's_barrier', 's_endpgm', 's_setprio', 's_sleep', 's_setpc', 's_bitcmp')):
                self.r = allr(0)
            else:
                self.w = R[0] if R else set(); self.r = allr(1)
                if 'saveexec' in mn: self.w = self.w | {('s', 126), ('s', 127)}

def need(p, c):
    n = 0
    vw = {x for x in p.w if x[0] != 's'}
    sw = {x for x in p.w if x[0] == 's'}
    if p.kind == 'valu':
        if c.kind == 'mfma' and vw & c.r: n = max(n, 2)
        if c.kind == 'valu':
            if p.trans and not c.trans and vw & c.r: n = max(n, 1)
            if (c.dpp or c.perml) and vw & c.r: n = max(n, 2)
            if c.rdlane and vw & c.r: n = max(n, 1)
            if sw & c.r: n = max(n, 4 if c.rdlane else 2)
            if 'sdwa' in p.mn and vw & (c.r | c.w): n = max(n, 1)
        if c.kind == 'vmem' and sw & c.r: n = max(n, 5)
        if c.kind == 'salu' and sw & c.r: n = max(n, 1)
        if p.dot:
            if c.kind == 'valu' and c.mn == p.mn:
                if vw & c.dotAB: n = max(n, 3)
            elif vw & (c.r | c.w): n = max(n, 3)
    if p.kind == 'mfma':
        big = p.passes == 8
        if c.kind == 'mfma':
            if p.D & (c.A | c.B): n = max(n, 12 if big else 8)
            if p.D & c.C and not (p.D == c.C and p.passes == c.passes): n = max(n, 10 if big else 6)
            if p.D & c.D and not (p.D == c.C and p.passes == c.passes): n = max(n, 10 if big else 6)
        elif c.kind in ('valu', 'vmem', 'ds'):
            if p.D & (c.r | c.w): n = max(n, 12 if big else 8)
            if c.kind == 'valu' and p.C & c.w: n = max(n, 7 if big else 3)
    if p.kind == 'salu' and ('s', 124) in p.w:
        if c.kind == 'vmem' and ('s', 124) in c.r: n = max(n, 1)
    if p.kind == 'vmem' and p.sdata and p.sdata & c.w:
        n = max(n, 2)
    return n

def pad(lines, log=None):
    out = []
    win = []
    pos = 0
    ins = 0
    for ln in lines:
        t = ln.strip()
        if not t or t.startswith(';') or t.startswith('.') or t.endswith(':'):
            out.append(ln); continue
        c = I(t)
        short = 0
        for p, ppos in win:
            d = pos - ppos
            n = need(p, c)
            if n > d and n - d > short:
                short = n - d; why = p.line
        if short:
            k = short
            while k > 0:
                s = min(k, 16)
                out.append(f"    s_nop {s-1}")
                k -= s
            pos += short; ins += 1
            if log is not None: log.append(f"pad {short}: [{why}] -> [{t}]")
        out.append(ln)
        pos += c.ws
        win.append((c, pos))
        while win and pos - win[0][1] > 20: win.pop(0)
        if c.mn == 's_endpgm': win = []
    return out
```

```python
import sys
from asmlib import *
import hazard

NAME = "adaLN_cond__grouped_kv_mqa__glu_gated_glu__prompt"
KA_X, KA_WQ, KA_WK, KA_WV, KA_WO, KA_BX, KA_WG, KA_WU, KA_WD, KA_C, KA_WMOD, KA_OUT, KA_DBG, KA_WS = [8*i for i in range(14)]
WS_MOD = 0x0
WS_KN  = 0x4000
WS_WQ  = 0x10000
WS_FLAG = 0x180000
WS_WKV = 0x90000
WS_WO  = 0xA0000
WS_KV  = 0x120000
WS_Q   = 0x200000
WS_X1  = 0x400000
WS_H2  = 0x600000
WS_WGU = 0x800000
WS_WD  = 0xC00000
WS_HH  = 0x1000000
import os
DBG = bool(os.environ.get("DBG"))
WS_TIM = 0x1800000
WS_END = 0x1900000 if DBG else 0x1800000
KIDX = {}
LOG2E = 1.4426950408889634

class VMQ:
    def __init__(self, a): self.a = a; self.q = []
    def issue(self, text, tag): self.a(text); self.q.append(tag)
    def count(self, tags):
        last = max(i for i, t in enumerate(self.q) if t in tags)
        return len(self.q) - 1 - last
    def wait(self, *tags, extra=""):
        n = self.count(tags)
        assert n <= 63, n
        self.a(f"s_waitcnt vmcnt({n}){extra}")

def srd(a, d, base, nbytes, off=0):
    if off:
        a(f"s_add_u32 s{d}, s{base}, {off}\ns_addc_u32 s{d+1}, s{base+1}, 0")
    else:
        a(f"s_mov_b32 s{d}, s{base}\ns_mov_b32 s{d+1}, s{base+1}")
    a(f"s_mov_b32 s{d+2}, {nbytes}\ns_mov_b32 s{d+3}, 0x00020000")

def kernel_begin(a, name, nwg):
    a(f".globl {name}\n.p2align 8\n.type {name},@function\n{name}:")
    a(f"s_cmp_ge_u32 s2, {nwg}\ns_cbranch_scc1 L_end_{name}")
    KIDX["cur"] = KIDX.get("cur", -1) + 1
    if DBG:
        a("s_memrealtime s[76:77]\ns_memtime s[80:81]")
        for i in range(1, 8): a(f"s_mov_b32 s{80+2*i}, 0")

def stamp(a, i):
    if DBG: a(f"s_memtime s[{80+2*i}:{81+2*i}]")

def fin(a):
    if DBG:
        k = KIDX["cur"]
        a(f"""
        s_waitcnt vmcnt(0)
        s_memtime s[94:95]
        s_memrealtime s[78:79]
        s_lshl_b32 s75, s2, 2
        s_add_u32 s75, s75, s3
        s_lshl_b32 s75, s75, 6
        s_add_u32 s75, s75, {WS_TIM + 0x14000*k}
        s_mov_b64 exec, 1
        v_mov_b32 v1, 0
        s_waitcnt lgkmcnt(0)
        """)
        a("s_getreg_b32 s74, hwreg(HW_REG_XCC_ID, 0, 4)")
        for i, r in enumerate([76, 78] + [80+2*j for j in range(8)] + [74]):
            a(f"v_mov_b32 v0, s{r}\nbuffer_store_dword v0, v1, s[20:23], s75 offen offset:{4*i}")
    a("s_endpgm")

def kernel_end(a, name, fall=True):
    if fall: fin(a)
    a(f"L_end_{name}:\ns_endpgm")

def descriptor(name, vgpr, accum, sgpr=96):
    return f""".amdhsa_kernel {name}
  .amdhsa_next_free_vgpr {vgpr}
  .amdhsa_next_free_sgpr {sgpr}
  .amdhsa_accum_offset {accum}
  .amdhsa_group_segment_fixed_size 0
  .amdhsa_kernarg_size 112
  .amdhsa_user_sgpr_count 2
  .amdhsa_user_sgpr_kernarg_segment_ptr 1
  .amdhsa_system_sgpr_workgroup_id_x 1
.end_amdhsa_kernel
"""

DPPM = "row_mask:0xf bank_mask:0xf"

def code_prefetch(a, first, last, vd):
    if os.environ.get("NOPF"): return
    lab = a.label("pc")
    a(f"""
    s_getpc_b64 s[48:49]
    {lab}:
    s_add_u32 s48, s48, {first}-{lab}
    s_addc_u32 s49, s49, 0
    s_mov_b32 s50, {last}-{first}
    s_mov_b32 s51, 0x00020000
    s_lshr_b32 s52, s2, 3
    s_lshl_b32 s52, s52, 2
    s_add_u32 s52, s52, s3
    s_lshl_b32 s52, s52, 10
    v_lshlrev_b32 v{vd}, 4, v2
    buffer_load_dwordx4 v[{vd}:{vd+3}], v{vd}, s[48:51], s52 offen
    """)

def k0(a):
    name = "k0_mod_kernel"
    kernel_begin(a, name, 272)
    a(f"""
    s_load_dwordx4 s[4:7], s[0:1], {KA_C}
    s_load_dwordx2 s[8:9], s[0:1], {KA_WS}
    s_load_dwordx4 s[12:15], s[0:1], {KA_WQ}
    s_load_dwordx4 s[16:19], s[0:1], {KA_WV}
    v_lshrrev_b32 v1, 6, v0
    v_and_b32 v2, 63, v0
    v_readfirstlane_b32 s3, v1
    """)
    code_prefetch(a, "k1_qkv_kernel", "L_code_end", 60)
    a("s_waitcnt lgkmcnt(0)")
    srd(a, 20, 8, WS_END)
    a("s_cmp_ge_u32 s2, 192\ns_cbranch_scc1 L_k0_shuf")
    srd(a, 24, 6, 512*3072*2)
    srd(a, 28, 4, 1024)
    a(f"""
    s_and_b32 s32, s2, 7
    s_lshr_b32 s33, s2, 3
    s_mul_i32 s32, s32, 6
    s_lshr_b32 s34, s33, 2
    s_add_u32 s32, s32, s34
    s_lshl_b32 s32, s32, 6
    s_and_b32 s33, s33, 3
    s_lshl_b32 s33, s33, 4
    s_add_u32 s32, s32, s33          ; col0
    s_lshl_b32 s36, s32, 1
    s_add_u32 s37, s36, {128*6144}
    s_add_u32 s38, s36, {256*6144}
    s_add_u32 s39, s36, {384*6144}
    v_lshrrev_b32 v3, 1, v0          ; row0
    v_and_b32 v4, 1, v0
    v_mul_u32_u24 v5, 6144, v3
    v_lshl_add_u32 v5, v4, 4, v5
    v_lshlrev_b32 v6, 1, v3
    """)
    for j in range(4):
        a(f"buffer_load_ushort v{8+j}, v6, s[28:31], 0 offen offset:{256*j}")
    for j in range(4):
        a(f"buffer_load_dwordx4 v[{16+4*j}:{19+4*j}], v5, s[24:27], s{36+j} offen")
    stamp(a, 1)
    a("s_waitcnt vmcnt(4)")
    stamp(a, 2)
    a(f"s_mov_b32 s40, {f32bits(-LOG2E):#x}")
    for j in range(4): a(f"v_lshlrev_b32 v{8+j}, 16, v{8+j}")
    for j in range(4): a(f"v_mul_f32 v{12+j}, s40, v{8+j}")
    for j in range(4): a(f"v_exp_f32 v{12+j}, v{12+j}")
    for j in range(4): a(f"v_add_f32 v{12+j}, 1.0, v{12+j}")
    for j in range(4): a(f"v_rcp_f32 v{12+j}, v{12+j}")
    for j in range(4): a(f"v_mul_f32 v{8+j}, v{8+j}, v{12+j}")
    for j in range(4): a(f"v_cvt_pk_bf16_f32 v{8+j}, v{8+j}, v{8+j}")
    for j in range(4): a(f"v_lshlrev_b32 v{8+j}, 16, v{8+j}")
    for j in range(4):
        a(f"s_waitcnt vmcnt({3-j})")
        for p in range(4):
            a(f"v_lshlrev_b32 v{40+2*p}, 16, v{16+4*j+p}")
            a(f"v_and_b32 v{41+2*p}, 0xffff0000, v{16+4*j+p}")
        for e in range(8):
            if j == 0: a(f"v_mul_f32 v{32+e}, v{8+j}, v{40+e}")
            else: a(f"v_fmac_f32 v{32+e}, v{8+j}, v{40+e}")
    stamp(a, 3)
    for sh in (2, 4, 8):
        for e in range(8):
            a(f"v_add_f32_dpp v{32+e}, v{32+e}, v{32+e} row_ror:{sh} {DPPM}")
    a(f"""
    v_lshrrev_b32 v3, 4, v0
    v_lshlrev_b32 v3, 6, v3
    v_lshl_add_u32 v3, v4, 5, v3
    v_and_b32 v7, 14, v0
    v_cmp_eq_u32 vcc, 0, v7
    s_and_saveexec_b64 s[42:43], vcc
    ds_write_b128 v3, v[32:35]
    ds_write_b128 v3, v[36:39] offset:16
    s_mov_b64 exec, s[42:43]
    s_waitcnt lgkmcnt(0)
    s_barrier
    s_cmp_lg_u32 s3, 0
    s_cbranch_scc1 L_k0_fin
    v_and_b32 v3, 15, v0
    v_lshlrev_b32 v3, 2, v3
    """)
    for r in range(8):
        a(f"ds_read2_b32 v[{16+2*r}:{17+2*r}], v3 offset0:{32*r} offset1:{32*r+16}")
    a("s_waitcnt lgkmcnt(0)")
    for r in range(8): a(f"v_add_f32 v{16+2*r}, v{16+2*r}, v{17+2*r}")
    for r in range(4): a(f"v_add_f32 v{16+4*r}, v{16+4*r}, v{18+4*r}")
    a("v_add_f32 v16, v16, v20\nv_add_f32 v24, v24, v28\nv_add_f32 v16, v16, v24")
    a(f"""
    v_cvt_pk_bf16_f32 v16, v16, v16
    v_lshlrev_b32 v16, 16, v16
    s_lshr_b32 s33, s32, 9
    s_cmp_eq_u32 s33, 1
    s_cselect_b32 s34, 1.0, 0
    s_cmp_eq_u32 s33, 4
    s_cselect_b32 s34, 1.0, s34
    v_add_f32 v16, s34, v16
    v_cvt_pk_bf16_f32 v16, v16, v16
    v_lshlrev_b32 v16, 16, v16
    s_lshl_b32 s35, s32, 2
    v_cmp_gt_u32 vcc, 16, v0
    s_and_saveexec_b64 s[42:43], vcc
    buffer_store_dword v16, v3, s[20:23], s35 offen
    L_k0_fin:
    """)
    fin(a)
    a("L_k0_shuf:\ns_cmp_ge_u32 s2, 256\ns_cbranch_scc1 L_k0_wo")
    srd(a, 24, 12, 512*512*2)
    a(f"""
    s_sub_u32 s32, s2, 192
    s_lshl_b32 s32, s32, 2
    s_add_u32 s32, s32, s3           ; gw 0..255
    s_and_b32 s33, s32, 31           ; k-step
    s_lshr_b32 s34, s32, 5
    s_lshl_b32 s35, s33, 14
    s_lshl_b32 s36, s34, 7
    s_add_u32 s35, s35, s36
    s_add_u32 s36, s35, 4096
    v_and_b32 v3, 31, v2
    v_lshrrev_b32 v4, 5, v2
    v_lshlrev_b32 v3, 1, v3
    v_lshl_add_u32 v3, v4, 13, v3
    v_lshlrev_b32 v5, 4, v2          ; lane*16
    """)
    for e in range(2):
        for j in range(8):
            a(f"buffer_load_ushort v{16+8*e+j}, v3, s[24:27], s{35+j//4} offen offset:{(j%4)*1024+e*64}")
    a(f"""
    s_cmp_ge_u32 s32, 32
    s_cbranch_scc1 L_k0_nokv
    s_cmp_lt_u32 s32, 16
    s_cselect_b32 s28, s14, s16
    s_cselect_b32 s29, s15, s17
    s_mov_b32 s30, {512*16*2}
    s_mov_b32 s31, 0x00020000
    s_and_b32 s37, s32, 15
    s_lshl_b32 s37, s37, 10
    v_and_b32 v6, 15, v2
    v_lshrrev_b32 v7, 4, v2
    v_lshlrev_b32 v6, 1, v6
    v_lshl_add_u32 v6, v7, 8, v6
    """)
    for j in range(8):
        a(f"buffer_load_ushort v{40+j}, v6, s[28:31], s37 offen offset:{32*j}")
    a("s_waitcnt vmcnt(0)")
    for m in range(4): a(f"v_lshl_or_b32 v{48+m}, v{41+2*m}, 16, v{40+2*m}")
    a(f"""
    s_lshl_b32 s37, s32, 10
    s_add_u32 s37, s37, {WS_WKV}
    buffer_store_dwordx4 v[48:51], v5, s[20:23], s37 offen
    L_k0_nokv:
    s_waitcnt vmcnt(0)
    """)
    for m in range(8): a(f"v_lshl_or_b32 v{32+m}, v{17+2*m}, 16, v{16+2*m}")
    a(f"""
    s_lshl_b32 s35, s34, 16
    s_lshl_b32 s36, s33, 10
    s_add_u32 s35, s35, s36
    s_add_u32 s35, s35, {WS_WQ}
    s_add_u32 s36, s35, 32768
    buffer_store_dwordx4 v[32:35], v5, s[20:23], s35 offen
    buffer_store_dwordx4 v[36:39], v5, s[20:23], s36 offen
    """)
    fin(a)
    a("L_k0_wo:")
    srd(a, 24, 18, 512*512*2)
    a(f"""
    s_sub_u32 s32, s2, 256
    s_lshl_b32 s33, s32, 15
    s_lshl_b32 s34, s3, 8
    s_add_u32 s33, s33, s34
    s_add_u32 s34, s33, 4096
    v_and_b32 v3, 15, v2
    v_lshrrev_b32 v4, 4, v2
    v_lshlrev_b32 v3, 4, v3
    v_lshl_add_u32 v3, v4, 13, v3
    v_lshlrev_b32 v5, 4, v2
    """)
    for r in range(8):
        a(f"buffer_load_dwordx4 v[{8+4*r}:{11+4*r}], v3, s[24:27], s{33+r//4} offen offset:{(r%4)*1024}")
    a(f"""
    v_mov_b32 v40, 0
    v_mov_b32 v41, 0
    v_mov_b32 v42, 0
    v_mov_b32 v43, 0
    s_lshl_b32 s35, s32, 2
    s_add_u32 s35, s35, s3
    s_lshl_b32 s35, s35, 10
    s_add_u32 s35, s35, {WS_FLAG}
    buffer_store_dwordx4 v[40:43], v5, s[20:23], s35 offen
    s_lshl_b32 s35, s3, 17
    s_lshr_b32 s36, s32, 1
    s_lshl_b32 s36, s36, 14
    s_add_u32 s35, s35, s36
    s_and_b32 s36, s32, 1
    s_lshl_b32 s36, s36, 10
    s_add_u32 s35, s35, s36
    s_add_u32 s35, s35, {WS_WO}
    s_mov_b32 s37, 0x05040100
    s_mov_b32 s38, 0x07060302
    s_waitcnt vmcnt(1)
    """)
    PI = [0, 1, 4, 5, 2, 3, 6, 7]
    for nt in range(8):
        for m in range(4):
            a(f"v_perm_b32 v{44+4*nt+m}, v{8+4*PI[2*m+1]+nt//2}, v{8+4*PI[2*m]+nt//2}, s{37+nt%2}")
        a(f"buffer_store_dwordx4 v[{44+4*nt}:{47+4*nt}], v5, s[20:23], s35 offen offset:{(nt%2)*2048}")
        if nt % 2: a("s_add_u32 s35, s35, 4096")
    kernel_end(a, name)
    return name, 272, 256, 1024, descriptor(name, 80, 80)

def k1(a):
    name = "k1_qkv_kernel"
    kernel_begin(a, name, 256)
    vq = VMQ(a)
    a(f"""
    s_load_dwordx2 s[4:5], s[0:1], {KA_X}
    s_load_dwordx2 s[8:9], s[0:1], {KA_WS}
    v_lshrrev_b32 v1, 6, v0
    v_and_b32 v2, 63, v0
    v_readfirstlane_b32 s3, v1
    s_and_b32 s32, s2, 7
    s_lshr_b32 s33, s2, 3
    s_lshl_b32 s32, s32, 3
    s_lshr_b32 s34, s33, 2
    s_add_u32 s32, s32, s34          ; tt
    s_and_b32 s33, s33, 3            ; ng
    v_and_b32 v3, 15, v2             ; c
    v_lshrrev_b32 v4, 4, v2          ; tq
    v_lshlrev_b32 v5, 4, v3
    v_lshl_add_u32 v5, v4, 10, v5    ; x voffset
    v_lshlrev_b32 v6, 5, v3
    v_lshlrev_b32 v7, 4, v2          ; lane*16
    s_lshl_b32 s35, s32, 15
    s_lshl_b32 s36, s3, 13
    s_add_u32 s35, s35, s36
    s_add_u32 s36, s35, 4096
    s_lshl_b32 s37, s33, 2
    s_add_u32 s37, s37, s3           ; n-tile
    s_lshl_b32 s38, s37, 15
    s_add_u32 s38, s38, {WS_WQ}
    s_waitcnt lgkmcnt(0)
    """)
    srd(a, 24, 4, 2048*512*2)
    srd(a, 20, 8, WS_END)
    X = 16
    for st in range(2):
        for i in range(4):
            vq.issue(f"buffer_load_dwordx4 v[{X+16*st+4*i}:{X+16*st+4*i+3}], v5, s[24:27], s{35+st} offen offset:{256*i}", "x")
    CA, SA = 48, 80
    for i in range(4):
        for hf in range(2):
            vq.issue(f"buffer_load_dwordx4 v[{SA+8*i+4*hf}:{SA+8*i+4*hf+3}], v6, s[20:23], 0 offen offset:{WS_MOD+512*i+16*hf}", "mod")
            vq.issue(f"buffer_load_dwordx4 v[{CA+8*i+4*hf}:{CA+8*i+4*hf+3}], v6, s[20:23], 0 offen offset:{WS_MOD+2048+512*i+16*hf}", "mod")
    for s in range(32):
        if s % 4 == 0 and s: a("s_add_u32 s38, s38, 4096")
        vq.issue(f"buffer_load_dwordx4 a[{4*s}:{4*s+3}], v7, s[20:23], s38 offen offset:{(s%4)*1024}", "w")
    a("s_mov_b32 s40, 0x3f803f80")
    a("v_mov_b32 v8, 0\nv_mov_b32 v9, 0\nv_mov_b32 v10, 0\nv_mov_b32 v11, 0")
    stamp(a, 1)
    vq.wait("x")
    stamp(a, 2)
    for r in range(16):
        for st in range(2):
            a(f"v_dot2_f32_bf16 v{8+2*st}, v{X+16*st+r}, s40, v{8+2*st}")
            a(f"v_dot2_f32_bf16 v{9+2*st}, v{X+16*st+r}, v{X+16*st+r}, v{9+2*st}")
    a(f"""
    s_cmp_eq_u32 s3, 0
    s_cbranch_scc0 L_k1_nokvw
    s_lshr_b32 s41, s33, 1
    s_lshl_b32 s41, s41, 14
    s_add_u32 s41, s41, {WS_WKV}
    """)
    for S in range(16):
        if S % 4 == 0 and S: a("s_add_u32 s41, s41, 4096")
        a(f"buffer_load_dwordx4 a[{128+4*S}:{128+4*S+3}], v7, s[20:23], s41 offen offset:{(S%4)*1024}")
    a("L_k1_nokvw:")
    for sh in (1, 2, 4, 8):
        for e in range(4):
            a(f"v_add_f32_dpp v{8+e}, v{8+e}, v{8+e} row_ror:{sh} {DPPM}")
    a(f"s_mov_b32 s40, {f32bits(1.0/512):#x}\ns_mov_b32 s41, {f32bits(1e-5):#x}")
    for st in range(2):
        m, q = 8+2*st, 9+2*st
        a(f"""
        v_mul_f32 v{m}, s40, v{m}
        v_mul_f32 v{q}, s40, v{q}
        v_fma_f32 v{q}, -v{m}, v{m}, v{q}
        v_max_f32 v{q}, 0, v{q}
        v_add_f32 v{q}, s41, v{q}
        v_rsq_f32 v{q}, v{q}
        """)
    for st in range(2):
        m, q = 8+2*st, 9+2*st
        a(f"v_mov_b32 v{112+4*st}, v{q}\nv_mul_f32 v{114+4*st}, -v{m}, v{q}")
    a(f"""
    v_lshlrev_b32 v12, 9, v3         ; c*512 = (c/2)*1024 + (c%2)*512
    v_and_b32 v13, 7, v3
    v_xor_b32 v14, v4, v13
    v_xor_b32 v15, 4, v14
    s_lshl_b32 s40, s3, 7
    v_lshl_add_u32 v14, v14, 4, v12
    v_lshl_add_u32 v15, v15, 4, v12
    v_add_u32 v14, s40, v14
    v_add_u32 v15, s40, v15
    """)
    a(f"s_waitcnt vmcnt({32})")
    stamp(a, 3)
    T = 120
    for st in range(2):
        for i in range(4):
            t = T + 16*((st*4+i) % 2)
            for p in range(4):
                a(f"v_lshlrev_b32 v{t+2*p}, 16, v{X+16*st+4*i+p}")
                a(f"v_and_b32 v{t+2*p+1}, 0xffff0000, v{X+16*st+4*i+p}")
            for p in range(4):
                a(f"v_pk_fma_f32 v[{t+2*p}:{t+2*p+1}], v[{t+2*p}:{t+2*p+1}], v[{112+4*st}:{113+4*st}], v[{114+4*st}:{115+4*st}] op_sel_hi:[1,0,0]")
            for p in range(4):
                a(f"v_pk_fma_f32 v[{t+2*p}:{t+2*p+1}], v[{t+2*p}:{t+2*p+1}], v[{CA+8*i+2*p}:{CA+8*i+2*p+1}], v[{SA+8*i+2*p}:{SA+8*i+2*p+1}]")
            for p in range(4):
                a(f"v_cvt_pk_bf16_f32 v{t+8+p}, v{t+2*p}, v{t+2*p+1}")
            a(f"ds_write_b128 v{14+st}, v[{t+8}:{t+11}] offset:{8192*i}")
    a("v_and_b32 v8, 31, v2\nv_lshrrev_b32 v9, 5, v2")
    for sm in range(4):
        a(f"""
        v_add_u32 v10, {2*sm}, v9
        v_xor_b32 v11, v8, v10
        v_lshlrev_b32 v10, 9, v10
        v_lshl_add_u32 v{16+sm}, v11, 4, v10
        """)
    a("s_waitcnt lgkmcnt(0)\ns_barrier")
    B = 160
    ACC = 192
    def rd(s): a(f"ds_read_b128 v[{B+4*(s%8)}:{B+4*(s%8)+3}], v{16+s%4} offset:{(s//4)*4096}")
    for s in range(8): rd(s)
    stamp(a, 4)
    a("s_waitcnt vmcnt(0)")
    stamp(a, 5)
    for s in range(32):
        a(f"s_waitcnt lgkmcnt({min(7, 31-s)})")
        c = "0" if s == 0 else f"v[{ACC}:{ACC+15}]"
        a(f"v_mfma_f32_32x32x16_bf16 v[{ACC}:{ACC+15}], a[{4*s}:{4*s+3}], v[{B+4*(s%8)}:{B+4*(s%8)+3}], {c}")
        if s + 8 < 32: rd(s+8)
    a(f"""
    v_lshrrev_b32 v10, 3, v8
    v_and_b32 v11, 7, v8
    v_lshlrev_b32 v10, 13, v10
    v_lshl_add_u32 v10, v9, 7, v10
    v_lshl_add_u32 v10, v11, 4, v10
    s_lshl_b32 s40, s32, 15
    s_lshl_b32 s41, s37, 9
    s_add_u32 s40, s40, s41
    s_add_u32 s40, s40, {WS_Q}
    s_mov_b32 s46, {f32bits(0.25*LOG2E):#x}
    """)
    stamp(a, 6)
    for r in range(16): a(f"v_mul_f32 v{ACC+r}, s46, v{ACC+r}")
    for r in range(8): a(f"v_cvt_pk_bf16_f32 v{ACC+16+r}, v{ACC+2*r}, v{ACC+2*r+1}")
    a(f"buffer_store_dwordx4 v[{ACC+16}:{ACC+19}], v10, s[20:23], s40 offen")
    a(f"buffer_store_dwordx4 v[{ACC+20}:{ACC+23}], v10, s[20:23], s40 offen offset:256")
    a("s_cmp_eq_u32 s3, 0\ns_cbranch_scc1 L_k1_kv")
    fin(a)
    a("L_k1_kv:")
    a("s_and_b32 s41, s33, 1\ns_lshl_b32 s42, s41, 4\nv_add_u32 v8, s42, v3")
    for sp in range(2):
        a(f"""
        v_add_u32 v10, {4*sp}, v4
        v_xor_b32 v11, v8, v10
        v_lshlrev_b32 v10, 9, v10
        v_lshl_add_u32 v{16+sp}, v11, 4, v10
        """)
    for S in range(16):
        a(f"ds_read_b128 v[{32+4*S}:{35+4*S}], v{16+S%2} offset:{(S//2)*4096}")
        if S == 7: a("s_waitcnt lgkmcnt(0)")
    a(f"""
    v_and_b32 v12, 1, v4
    v_lshrrev_b32 v13, 1, v4
    v_lshlrev_b32 v13, 3, v13
    s_lshl_b32 s40, s32, 11
    s_add_u32 s40, s40, {WS_KV}
    s_waitcnt vmcnt(2) lgkmcnt(0)
    s_cmp_ge_u32 s33, 2
    s_cbranch_scc1 L_k1_v
    """)
    for S in range(16):
        c = "0" if S == 0 else "v[20:23]"
        a(f"v_mfma_f32_16x16x32_bf16 v[20:23], a[{128+4*S}:{131+4*S}], v[{32+4*S}:{35+4*S}], {c}")
    a(f"""
    v_lshl_add_u32 v13, v12, 9, v13
    v_lshl_add_u32 v13, v8, 4, v13
    v_cvt_pk_bf16_f32 v24, v20, v21
    v_cvt_pk_bf16_f32 v25, v22, v23
    buffer_store_dwordx2 v[24:25], v13, s[20:23], s40 offen
    v_dot2_f32_bf16 v26, v24, v24, 0
    v_dot2_f32_bf16 v26, v25, v25, v26
    v_mov_b32 v27, v26
    v_permlane16_swap_b32 v26, v27
    v_add_f32 v26, v26, v27
    v_mov_b32 v27, v26
    v_permlane32_swap_b32 v26, v27
    v_add_f32 v26, v26, v27
    """)
    for sh in (1, 2, 4, 8): a(f"v_max_f32_dpp v26, v26, v26 row_ror:{sh} {DPPM}")
    a(f"""
    s_lshl_b32 s40, s32, 1
    s_add_u32 s40, s40, s41
    s_lshl_b32 s40, s40, 2
    s_add_u32 s40, s40, {WS_KN}
    v_mov_b32 v27, 0
    s_mov_b64 exec, 1
    buffer_store_dword v26, v27, s[20:23], s40 offen
    """)
    fin(a)
    a("L_k1_v:")
    for S in range(16):
        c = "0" if S == 0 else "v[20:23]"
        a(f"v_mfma_f32_16x16x32_bf16 v[20:23], v[{32+4*S}:{35+4*S}], a[{128+4*S}:{131+4*S}], {c}")
    a(f"""
    s_lshl_b32 s41, s41, 9
    s_add_u32 s40, s40, s41
    v_lshlrev_b32 v13, 5, v13
    v_lshl_add_u32 v13, v12, 3, v13
    v_lshl_add_u32 v13, v3, 4, v13
    v_cvt_pk_bf16_f32 v24, v20, v21
    v_cvt_pk_bf16_f32 v25, v22, v23
    buffer_store_dwordx2 v[24:25], v13, s[20:23], s40 offen offset:1024
    """)
    kernel_end(a, name)
    return name, 256, 256, 32768, descriptor(name, 448, 256)

HEADER = open(f"cdna_kernels/{NAME}.s.ref").read().split("; Override launch")[0]

def build(kernels, path):
    a = Asm()
    a('.amdgcn_target "amdgcn-amd-amdhsa--gfx950"\n.text')
    infos = [k(a) for k in kernels]
    a("L_code_end:")
    log = []
    lines = hazard.pad(a.L, log)
    order = [int(x) for x in os.environ["KLIST"].split(",")] if os.environ.get("KLIST") else range(len(infos))
    head = HEADER + "".join(f"; @launch kernel={n} grid=({g},1,1) block=({b},1,1) lds={l}\n" for n, g, b, l, d in [infos[i] for i in order])
    desc = '.section .rodata,"a"\n' + "".join(".p2align 6\n" + d for n, g, b, l, d in infos)
    open(path, "w").write(head + "\n".join(lines) + "\n" + desc)
    return log

if __name__ == "__main__":
    import gen2
    gen2.main()
```
